```python
import torch

def _softmax(x, axis=-1):
    return torch.softmax(x, dim=axis)
def _gelu(x):
    return torch.nn.functional.gelu(x, approximate="tanh")
def _silu(x):
    return torch.nn.functional.silu(x)
def _sigmoid(x):
    return torch.sigmoid(x)
def _layernorm(x, axis=-1, eps=1e-5):
    m = x.mean(dim=axis, keepdim=True)
    v = x.var(dim=axis, keepdim=True, unbiased=False)
    return (x - m) / torch.sqrt(v + eps)
def _scatter_add(tgt, idx, src, axis=0):
    return tgt.clone().index_add_(axis, idx, src)
def _segment_sum(src, seg, n):
    out = torch.zeros((n,) + src.shape[1:], dtype=src.dtype)
    return out.index_add_(0, seg, src)
def _pad(x, pw):
    flat = tuple(v for pair in reversed(pw) for v in pair)
    return torch.nn.functional.pad(x, flat)

kernel_name = 'concat_heads__mha_block_cached__mha_block_cached__near_ridge'

def setup_inputs():

    _w = (lambda a: (lambda t: t.to(torch.bfloat16) if t.is_floating_point() else t)(torch.as_tensor(a)))
    def _A_setup():
        B, Sq, D = 16, 112, 512
        H, Sk, Dh = 32, 512, 128
        return {
            "x": _w((lambda *s: torch.randn(*s, dtype=torch.bfloat16) * 0.8)(B, Sq, D)),
            "k_cache": _w((lambda *s: torch.randn(*s, dtype=torch.bfloat16) * 0.8)(B, H, Sk, Dh)),
            "v_cache": _w((lambda *s: torch.randn(*s, dtype=torch.bfloat16) * 0.05)(B, H, Sk, Dh)),
            "wq": _w((lambda *s: torch.randn(*s, dtype=torch.bfloat16) * 0.8)(D, H * Dh) * (D ** -0.5)),
            "wo": _w((lambda *s: torch.randn(*s, dtype=torch.bfloat16) * 0.05)(H * Dh, D) * ((H * Dh) ** -0.5)),
        }
    _A_in = _A_setup()

    def _B_setup():
        B, Sq, D = 16, 112, 512
        H, Sk, Dh = 32, 512, 128
        return {
            "x": _w((lambda *s: torch.randn(*s, dtype=torch.bfloat16) * 0.8)(B, Sq, D)),
            "k_cache": _w((lambda *s: torch.randn(*s, dtype=torch.bfloat16) * 0.8)(B, H, Sk, Dh)),
            "v_cache": _w((lambda *s: torch.randn(*s, dtype=torch.bfloat16) * 0.05)(B, H, Sk, Dh)),
            "wq": _w((lambda *s: torch.randn(*s, dtype=torch.bfloat16) * 0.8)(D, H * Dh) * (D ** -0.5)),
            "wo": _w((lambda *s: torch.randn(*s, dtype=torch.bfloat16) * 0.05)(H * Dh, D) * ((H * Dh) ** -0.5)),
        }
    _B_in = _B_setup()

    return {
        "A_x": _A_in["x"],
        "A_k_cache": _A_in["k_cache"],
        "A_v_cache": _A_in["v_cache"],
        "A_wq": _A_in["wq"],
        "A_wo": _A_in["wo"],
        "B_x": _B_in["x"],
        "B_k_cache": _B_in["k_cache"],
        "B_v_cache": _B_in["v_cache"],
        "B_wq": _B_in["wq"],
        "B_wo": _B_in["wo"],
    }

def reference(A_x, A_k_cache, A_v_cache, A_wq, A_wo, B_x, B_k_cache, B_v_cache, B_wq, B_wo):
    def _A_ref(x, k_cache, v_cache, wq, wo):
        B, Sq, D = x.shape
        H, Dh = 32, 128
        q = (lambda x, *d: x.permute(*d))((x @ wq).reshape(B, Sq, H, Dh), 0, 2, 1, 3)
        scores = torch.einsum("bhqd,bhkd->bhqk", q, k_cache) * (Dh ** -0.5)
        p = _softmax(scores, axis=-1)
        o = torch.einsum("bhqk,bhkd->bhqd", p, v_cache)
        return (lambda x, *d: x.permute(*d))(o, 0, 2, 1, 3).reshape(B, Sq, H * Dh) @ wo

    def _B_ref(x, k_cache, v_cache, wq, wo):
        B, Sq, D = x.shape
        H, Dh = 32, 128
        q = (lambda x, *d: x.permute(*d))((x @ wq).reshape(B, Sq, H, Dh), 0, 2, 1, 3)
        scores = torch.einsum("bhqd,bhkd->bhqk", q, k_cache) * (Dh ** -0.5)
        p = _softmax(scores, axis=-1)
        o = torch.einsum("bhqk,bhkd->bhqd", p, v_cache)
        return (lambda x, *d: x.permute(*d))(o, 0, 2, 1, 3).reshape(B, Sq, H * Dh) @ wo

    a = _A_ref(A_x, A_k_cache, A_v_cache, A_wq, A_wo)
    b = _B_ref(B_x, B_k_cache, B_v_cache, B_wq, B_wo)
    return torch.concatenate([a, b], axis=-1)
```

```python
import re

def vr(b, n=1):
    return f"v{b}" if n == 1 else f"v[{b}:{b+n-1}]"
def sr(b, n=1):
    return f"s{b}" if n == 1 else f"s[{b}:{b+n-1}]"

class Stream:
    def __init__(self):
        self.L = []
        self.lg = []
        self.vm = []
    def e(self, s):
        self.L.append(s)
    def label(self, s):
        self.L.append(s + ":")
    def ds(self, text, tag=None):
        if len(self.lg) >= 15:
            self.e("s_waitcnt lgkmcnt(14)")
            self.lg = self.lg[-14:]
        self.e(text); self.lg.append(tag)
    def vmem(self, text, tag=None):
        if len(self.vm) >= 63:
            self.e("s_waitcnt vmcnt(62)")
            self.vm = self.vm[-62:]
        self.e(text); self.vm.append(tag)
    def need_ds(self, *tags):
        idx = -1
        for i, t in enumerate(self.lg):
            if t in tags: idx = i
        if idx >= 0:
            rem = len(self.lg) - 1 - idx
            self.e(f"s_waitcnt lgkmcnt({rem})")
            self.lg = self.lg[idx+1:]
    def need_vm(self, *tags):
        idx = -1
        for i, t in enumerate(self.vm):
            if t in tags: idx = i
        if idx >= 0:
            rem = len(self.vm) - 1 - idx
            self.e(f"s_waitcnt vmcnt({rem})")
            self.vm = self.vm[idx+1:]
    def drain_ds(self, force=False):
        if self.lg or force:
            self.e("s_waitcnt lgkmcnt(0)"); self.lg = []
    def drain_vm(self, force=False):
        if self.vm or force:
            self.e("s_waitcnt vmcnt(0)"); self.vm = []

_reg = re.compile(r"^-?(?:abs\()?([vs])(?:(\d+)|\[(\d+):(\d+)\])\)?$")
def regs(op):
    op = op.strip()
    if op == "vcc": return {("s", "vcc")}
    if op == "exec": return {("s", "exec")}
    if op == "m0": return {("s", "m0")}
    m = _reg.match(op)
    if not m: return set()
    k = m.group(1)
    if m.group(2) is not None: return {(k, int(m.group(2)))}
    return {(k, i) for i in range(int(m.group(3)), int(m.group(4)) + 1)}

TRANS = ("v_exp_f32", "v_log_f32", "v_rcp_f32", "v_rsq_f32", "v_sqrt_f32")
def parse(line):
    s = line.split(";")[0].strip()
    if not s or s.endswith(":") or s.startswith("."): return None
    p = s.split(None, 1)
    mn = p[0]
    rest = p[1] if len(p) > 1 else ""
    rest = re.sub(r"\s+(op_sel|op_sel_hi|neg_lo|neg_hi):\[[^\]]*\]", "", rest)
    ops = [o.strip() for o in rest.split(",")]
    if ops:
        last = ops[-1].split()
        mods = last[1:] if last else []
        ops[-1] = last[0] if last else ""
    else:
        mods = []
    d = dict(mn=mn, ops=ops, mods=mods, rd=set(), wr=set(), kind="other", states=1)
    if mn == "s_nop":
        d["states"] = int(ops[0]) + 1; d["kind"] = "nop"
    elif mn.startswith("v_mfma"):
        d["kind"] = "mfma"; d["wr"] = regs(ops[0]); d["a"] = regs(ops[1]) | regs(ops[2]); d["c"] = regs(ops[3]); d["rd"] = d["a"] | d["c"]
    elif mn.startswith("v_permlane32_swap"):
        d["kind"] = "valu"; d["perm"] = True; d["wr"] = regs(ops[0]) | regs(ops[1]); d["rd"] = set(d["wr"])
    elif mn.startswith("v_cmp"):
        d["kind"] = "valu"; d["wr"] = regs(ops[0]); d["rd"] = set().union(*[regs(o) for o in ops[1:]])
    elif mn.startswith("v_readfirstlane") or mn.startswith("v_readlane"):
        d["kind"] = "valu"; d["rl"] = True; d["wr"] = regs(ops[0]); d["rd"] = regs(ops[1])
    elif mn.startswith("v_"):
        d["kind"] = "valu"; d["wr"] = regs(ops[0]); d["rd"] = set().union(*[regs(o) for o in ops[1:]]) if len(ops) > 1 else set()
        if mn.startswith("v_fmac"): d["rd"] |= d["wr"]
        if mn.startswith(TRANS): d["trans"] = True
    elif mn.startswith("ds_read"):
        d["kind"] = "ds"; d["wr"] = regs(ops[0]); d["rd"] = regs(ops[1])
    elif mn.startswith("ds_write"):
        d["kind"] = "ds"; d["rd"] = set().union(*[regs(o) for o in ops])
    elif mn.startswith("buffer_load") or mn.startswith("global_load"):
        d["kind"] = "vmem"
        if "lds" in mods:
            d["rd"] = set().union(*[regs(o) for o in ops]) | {("s", "m0")}; d["dma"] = True
        else:
            d["wr"] = regs(ops[0]); d["rd"] = set().union(*[regs(o) for o in ops[1:]])
    elif mn.startswith("buffer_store") or mn.startswith("buffer_atomic") or mn.startswith("global_store"):
        d["kind"] = "vmem"; d["rd"] = set().union(*[regs(o) for o in ops])
        if "x4" in mn or "x3" in mn: d["wide"] = regs(ops[0])
    elif mn.startswith("s_"):
        d["kind"] = "salu"
        if mn.startswith(("s_cmp", "s_bitcmp", "s_cbranch", "s_branch", "s_waitcnt", "s_barrier", "s_setprio", "s_sleep", "s_endpgm")):
            d["rd"] = set().union(*[regs(o) for o in ops]) if ops else set()
        else:
            d["wr"] = regs(ops[0]); d["rd"] = set().union(*[regs(o) for o in ops[1:]]) if len(ops) > 1 else set()
            if mn.startswith("s_addk"): d["rd"] |= d["wr"]
    return d

def required(p, c):
    n = 0
    vw = {r for r in p["wr"] if r[0] == "v"}
    sw = {r for r in p["wr"] if r[0] == "s"}
    if p["kind"] == "mfma":
        if c["kind"] == "mfma":
            if vw & c["a"]: n = max(n, 12)
            if vw & c["c"] and c["c"] != vw: n = max(n, 10)
            if vw & c["wr"] and not (vw & c["c"]): n = max(n, 0)
        elif c["kind"] in ("valu", "ds", "vmem"):
            if vw & (c["rd"] | c["wr"]): n = max(n, 12)
        if c["kind"] == "valu" and (p["c"] & c["wr"]): n = max(n, 7)
    if p["kind"] == "valu":
        if c["kind"] == "mfma" and vw & c["rd"]: n = max(n, 2)
        if c.get("perm") and vw & c["rd"]: n = max(n, 2)
        if c.get("rl") and vw & c["rd"]: n = max(n, 1)
        if p.get("trans") and c["kind"] == "valu" and vw & c["rd"]: n = max(n, 1)
        if c["kind"] == "vmem" and sw & c["rd"]: n = max(n, 5)
        if c["kind"] == "valu" and sw & c["rd"]: n = max(n, 2)
        if c["kind"] == "salu" and sw & c["rd"]: n = max(n, 1)
    if p["kind"] == "salu" and ("s", "m0") in sw and c.get("dma"): n = max(n, 1)
    if p.get("wide") and (p["wide"] & c["wr"]): n = max(n, 2)
    return n

def pad_hazards(lines, report=None):
    out = []
    hist = []
    for ln in lines:
        d = parse(ln)
        if d is None:
            out.append(ln); continue
        need = 0
        dist = 0
        for p in reversed(hist):
            r = required(p, d)
            if r > dist: need = max(need, r - dist)
            dist += p["states"]
            if dist >= 20: break
        if need > 0:
            if report is not None: report.append((need, ln))
            k = need
            while k > 0:
                t = min(k, 16)
                out.append(f"s_nop {t-1}"); hist.append(parse(f"s_nop {t-1}")); k -= t
        out.append(ln); hist.append(d)
        if d["mn"] in ("s_branch", "s_endpgm", "s_setpc_b64"): hist = []
        if len(hist) > 40: hist = hist[-40:]
    return out
```

```python
import sys, math, struct
sys.path.insert(0, "work")
from asmlib import *

KNAME = "concat_heads__mha_block_cached__mha_block_cached__near_ridge_kernel"
MF = "v_mfma_f32_32x32x16_bf16"
WS_BYTES = 288882688
XCH_OFF = 0
FLAG_OFF = 0x2000000
PROF_OFF = 0x2100000
DUMP_OFF = 0x3000000
LDS_KV, LDS_W, LDS_H = 0, 65536, 131072
OOB = 0x7fff0000

sK, sV, sWq, sWo, sWs, sX, sOut, sDbg = 8, 12, 16, 20, 24, 28, 32, 36
sBr, sB, sM, sCl, sIdx = 3, 4, 5, 6, 7
sWave, sW = 42, 43
sH, sKVb = 44, 48
sOwn, sC = 52, 53
sT0, sT1, sT2, sT3 = 56, 57, 58, 59
sSo = 60
sW1k, sW4k = 61, 62
sLoop, sHead = 63, 64
sXb, sFb = 65, 66
sSpin = 67
sProf = 70

DEF = dict(npre=1, prof=False, dump=False, kvf=" nt", wf="", xf="", bar_t1=0, G=2, flaglag=40,
           codepf=True, wopf=True, strict=False, prio=True, stage=(7,), last_bar=27)

def fbits(x):
    return struct.unpack("<I", struct.pack("<f", x))[0]

class Gen:
    def __init__(self, **kw):
        self.c = dict(DEF); self.c.update(kw)

    def stamp(self, S, i):
        if self.c["prof"]:
            S.e(f"s_memrealtime {sr(sProf + 2*i, 2)}")
            S.drain_ds(force=True)

    def dma_k(self, k):
        r = k // 16; c = (k % 16) // 2; isv = k % 2; slot = LDS_KV + (k % 4) * 16384
        f = self.c["kvf"]
        out = []
        for i in range(4):
            def g(S, i=i):
                if isv:
                    if i == 0:
                        S.e(f"s_add_u32 m0, s{sW4k}, {slot}")
                        S.e(f"s_add_u32 s{sSo}, s{sKVb + r}, {c * 16384}")
                    S.vmem(f"buffer_load_dwordx4 v{self.pVd}, {sr(sV, 4)}, s{sSo} offen offset:{i * 1024}{f} lds", ("kv", k))
                else:
                    if i == 0:
                        S.e(f"s_add_u32 m0, s{sW1k}, {slot}")
                        S.e(f"s_add_u32 s{sSo}, s{sKVb + r}, {c * 16384}")
                    else:
                        S.e(f"s_addk_i32 m0, 0x1000")
                        S.e(f"s_addk_i32 s{sSo}, 0x1000")
                    S.vmem(f"buffer_load_dwordx4 v{self.pKd}, {sr(sK, 4)}, s{sSo} offen{f} lds", ("kv", k))
            out.append(g)
        return out

    def dma_w(self, w, vreg):
        f = self.c["wf"]
        out = []
        for i in range(4):
            def g(S, i=i):
                if i == 0:
                    S.e(f"s_add_u32 m0, s{sW4k}, {w['slot']}")
                    if w["kind"] == "A":
                        S.e(f"s_lshl_b32 s{sSo}, s{sH + w['r']}, 8")
                        S.e(f"s_add_u32 s{sSo}, s{sSo}, {w['c'] * 64 * 8192}")
                    else:
                        S.e(f"s_add_u32 s{sT0}, s{sOwn}, {w['t']}")
                        S.e(f"s_and_b32 s{sT0}, s{sT0}, 7")
                        S.e(f"s_lshl_b32 s{sT0}, s{sT0}, 7")
                        S.e(f"s_lshl_b32 s{sSo}, s{sH + w['r']}, 17")
                        S.e(f"s_add_u32 s{sSo}, s{sSo}, s{sT0}")
                else:
                    S.e(f"s_addk_i32 s{sSo}, {31744 if w['kind'] == 'A' else 7168}")
                srd = sWq if w["kind"] == "A" else sWo
                S.vmem(f"buffer_load_dwordx4 v{vreg}, {sr(srd, 4)}, s{sSo} offen offset:{i * 1024}{f} lds", ("w", w["id"]))
            out.append(g)
        return out

    def run_items(self, S, items, nbuf, bufbase, RA):
        n = len(items)
        def issue(i):
            it = items[i]
            if it.get("pre"): it["pre"](S)
            b = bufbase + (i % nbuf) * 4
            if len(it["rd"]) == 1:
                S.ds(it["rd"][0].format(d=vr(b, 4)), ("a", id(items), i))
            else:
                for j, t in enumerate(it["rd"]):
                    S.ds(t.format(d=vr(b + 2 * j, 2)), ("a", id(items), i))
        for i in range(min(RA, n)): issue(i)
        for i in range(n):
            it = items[i]
            if it.get("premf"): it["premf"](S)
            S.need_ds(("a", id(items), i))
            S.e(it["mf"].format(a=vr(bufbase + (i % nbuf) * 4, 4)))
            if i + RA < n: issue(i + RA)
            for f in it.get("fill", []): f(S)

    def wo_lane_addr(self, S, lane, dst, t0, t1):
        S.e(f"v_lshrrev_b32 v{t0}, 3, v{lane}")
        S.e(f"v_lshlrev_b32 v{dst}, 10, v{t0}")
        S.e(f"v_lshrrev_b32 v{t0}, 2, v{lane}")
        S.e(f"v_and_b32 v{t0}, 4, v{t0}")
        S.e(f"v_and_b32 v{t1}, 7, v{lane}")
        S.e(f"v_xor_b32 v{t0}, v{t0}, v{t1}")
        S.e(f"v_lshl_add_u32 v{dst}, v{t0}, 4, v{dst}")
        S.e(f"s_lshl_b32 s{sT0}, s{sW}, 15")
        S.e(f"v_add_u32 v{dst}, s{sT0}, v{dst}")

    def lane_id(self, S, dst):
        S.e(f"v_mbcnt_lo_u32_b32 v{dst}, -1, 0")
        S.e(f"v_mbcnt_hi_u32_b32 v{dst}, -1, v{dst}")

    def xch_lane_addr(self, S, lane, dst, t0, t1):
        S.e(f"v_lshrrev_b32 v{t0}, 5, v{lane}")
        S.e(f"v_and_b32 v{t1}, 31, v{lane}")
        S.e(f"v_mul_u32_u24 v{t0}, 28, v{t0}")
        S.e(f"v_add_lshl_u32 v{dst}, v{t0}, v{t1}, 4")
        S.e(f"v_cmp_gt_u32 vcc, 28, v{t1}")
        S.e(f"v_mov_b32 v{t0}, {OOB}")
        S.e(f"v_cndmask_b32 v{dst}, v{t0}, v{dst}, vcc")

    def make_schedule(self):
        c = self.c
        W = []
        step_of = {}
        def add(**kw):
            kw["id"] = len(W); W.append(kw); return kw
        for cc in range(8): add(kind="A", r=0, c=cc)
        for r in (1, 2, 3):
            ks = [k for k in range(12 * (r - 1), 12 * r) if k % 3 != 2]
            for cc in range(8): step_of[ks[cc]] = add(kind="A", r=r, c=cc)
        npre = c["npre"]
        pre = [(t, r) for r in (0, 1) for t in range(1, npre + 1)]
        ks = list(range(39, 49, 1))
        if pre:
            st = max(1, len(ks) // len(pre))
            for i, (t, r) in enumerate(pre): step_of[ks[i * st]] = add(kind="D", t=t, r=r)
        for i in range(npre): step_of[50 + 2 * i] = add(kind="D", t=i + 1, r=2)
        nmain = len(W)
        for w in W: w["slot"] = LDS_W + (w["id"] % 4) * 16384
        tail = []
        for t in range(1, 9):
            for r in ([3] if t <= npre else [0, 1, 2, 3]): tail.append(add(kind="D", t=t, r=r))
        ring = [LDS_W + ((nmain + i) % 4) * 16384 for i in range(4)] + [LDS_KV + i * 16384 for i in range(4)]
        for n, w in enumerate(tail): w["slot"] = ring[n % 8]; w["n"] = n
        self.W, self.step_of, self.tail = W, step_of, tail
        G = c["G"]; NT = len(tail)
        lb = NT - (32 - c["last_bar"])
        self.tbars = [n for n in range(G, NT, G) if n < lb] + [lb]

    def entry(self):
        S = Stream(); e = S.e
        e("s_cmp_ge_u32 s2, 256"); e("s_cbranch_scc1 L_end")
        if self.c["prof"]: e(f"s_memrealtime {sr(sProf, 2)}")
        e(f"s_and_b32 s{sT0}, s2, 7")
        e(f"s_lshr_b32 s{sBr}, s{sT0}, 2")
        e(f"s_mul_i32 s{sT1}, s{sBr}, 40")
        e(f"s_add_u32 s40, s0, s{sT1}"); e("s_addc_u32 s41, s1, 0")
        e(f"s_load_dwordx2 {sr(sX, 2)}, s[40:41], 0")
        e(f"s_load_dwordx2 {sr(sWq, 2)}, s[40:41], 24")
        e(f"s_load_dwordx2 {sr(sK, 2)}, s[40:41], 8")
        e(f"s_load_dwordx2 {sr(sV, 2)}, s[40:41], 16")
        e(f"s_load_dwordx2 {sr(sWo, 2)}, s[40:41], 32")
        e(f"s_load_dwordx2 {sr(sOut, 2)}, s[0:1], 80")
        e(f"s_load_dwordx2 {sr(sDbg, 2)}, s[0:1], 88")
        e(f"s_load_dwordx2 {sr(sWs, 2)}, s[0:1], 96")
        e("v_lshrrev_b32 v1, 6, v0")
        e(f"s_lshr_b32 s{sIdx}, s2, 3")
        e(f"v_readfirstlane_b32 s{sWave}, v1")
        e(f"s_lshr_b32 s{sB}, s{sIdx}, 1")
        e(f"s_and_b32 s{sT0}, s{sT0}, 3"); e(f"s_lshl_b32 s{sT0}, s{sT0}, 1")
        e(f"s_and_b32 s{sM}, s{sIdx}, 1"); e(f"s_add_u32 s{sM}, s{sM}, s{sT0}")
        e(f"s_lshl_b32 s{sCl}, s{sBr}, 4"); e(f"s_add_u32 s{sCl}, s{sCl}, s{sB}")
        for r, n in ((sK, 0x4000000), (sV, 0x4000000), (sWq, 0x400000), (sWo, 0x400000), (sWs, WS_BYTES),
                     (sX, 114688), (sOut, 16 * 112 * 1024 * 2), (sDbg, 256)):
            e(f"s_mov_b32 s{r + 2}, {n}"); e(f"s_mov_b32 s{r + 3}, 0x20000")
        e(f"s_and_b32 s{sW}, s{sWave}, 3")
        e(f"s_lshl_b32 s{sW1k}, s{sW}, 10"); e(f"s_lshl_b32 s{sW4k}, s{sW}, 12")
        e(f"s_lshl_b32 s{sT1}, s{sM}, 2"); e(f"s_lshl_b32 s{sT2}, s{sB}, 5")
        for r in range(4):
            e(f"s_add_u32 s{sT0}, s{sB}, {r}"); e(f"s_and_b32 s{sT0}, s{sT0}, 3")
            e(f"s_add_u32 s{sH + r}, s{sT0}, s{sT1}")
            e(f"s_add_u32 s{sT0}, s{sH + r}, s{sT2}"); e(f"s_lshl_b32 s{sKVb + r}, s{sT0}, 17")
        e(f"s_add_u32 s{sOwn}, s{sM}, s{sB}"); e(f"s_and_b32 s{sOwn}, s{sOwn}, 7")
        e(f"s_mov_b32 s{sC}, {fbits(math.log2(math.e) / math.sqrt(128.0)):#x}")
        e("v_and_b32 v0, 63, v0")
        e(f"s_mul_i32 s{sT0}, s{sB}, 114688")
        e("s_waitcnt lgkmcnt(0)")
        e(f"s_add_u32 s{sX}, s{sX}, s{sT0}"); e(f"s_addc_u32 s{sX + 1}, s{sX + 1}, 0")
        e(f"s_cmp_lt_u32 s{sWave}, 4"); e("s_cbranch_scc1 L_att")
        return S.L

    def proj(self):
        c = self.c
        S = Stream(); e = S.e
        X, QA, O0, AB = 0, 128, 192, 224
        Wa = 244
        self.pKd, self.pVd, Wd, H, Xa = 248, 249, 250, 251, 252
        t0, t1, t2 = 253, 254, 255
        Oreg = [O0, 0, 32, 64]
        ACC = [96, 128, 160]
        W = self.W
        e(f"v_and_b32 v{t0}, 31, v0")
        e(f"s_mul_i32 s{sT0}, s{sW}, 28")
        e(f"v_add_u32 v{t1}, s{sT0}, v{t0}")
        e(f"v_lshlrev_b32 v{t1}, 10, v{t1}")
        e(f"v_lshrrev_b32 v{t2}, 5, v0")
        e(f"v_lshl_add_u32 v{t1}, v{t2}, 4, v{t1}")
        e(f"v_cmp_gt_u32 vcc, 28, v{t0}")
        e(f"v_mov_b32 v{t2}, {OOB}")
        e(f"v_cndmask_b32 v{Xa}, v{t2}, v{t1}, vcc")
        e(f"v_lshrrev_b32 v{t0}, 4, v0")
        e(f"v_and_b32 v{t1}, 15, v0")
        e(f"v_lshlrev_b32 v{t2}, 2, v{t0}")
        e(f"v_xor_b32 v{t2}, v{t2}, v{t1}")
        e(f"v_lshlrev_b32 v{t2}, 4, v{t2}")
        e(f"v_lshl_add_u32 v{Wd}, v{t0}, 13, v{t2}")
        e(f"s_lshl_b32 s{sT0}, s{sW}, 17")
        e(f"v_add_u32 v{Wd}, s{sT0}, v{Wd}")
        e(f"v_lshl_add_u32 v{self.pVd}, v{t0}, 8, v{t2}")
        e(f"v_add_u32 v{self.pVd}, s{sW4k}, v{self.pVd}")
        e(f"s_lshl_b32 s{sT0}, s{sW}, 2")
        e(f"v_add_u32 v{t2}, s{sT0}, v{t0}")
        e(f"v_xor_b32 v{t2}, v{t2}, v{t1}")
        e(f"v_lshlrev_b32 v{t2}, 4, v{t2}")
        e(f"v_lshl_add_u32 v{self.pKd}, v{t0}, 8, v{t2}")
        e(f"v_add_u32 v{self.pKd}, s{sW1k}, v{self.pKd}")
        e(f"s_lshl_b32 s{sT0}, s{sW}, 13"); e(f"s_add_u32 s{sT0}, s{sT0}, {LDS_H}")
        e(f"v_lshlrev_b32 v{H}, 4, v0"); e(f"v_add_u32 v{H}, s{sT0}, v{H}")
        e(f"v_bfe_u32 v{t0}, v0, 2, 2")
        e(f"v_lshrrev_b32 v{t1}, 5, v0")
        e(f"v_lshl_add_u32 v{t1}, v{t1}, 3, v{t0}")
        e(f"v_lshlrev_b32 v{t1}, 8, v{t1}")
        e(f"v_bfe_u32 v{t2}, v0, 4, 1"); e(f"v_lshl_add_u32 v{t1}, v{t2}, 5, v{t1}")
        e(f"v_and_b32 v{t2}, 1, v0"); e(f"v_lshl_add_u32 v{t1}, v{t2}, 4, v{t1}")
        e(f"v_bfe_u32 v{t2}, v0, 1, 1"); e(f"v_lshl_add_u32 v{t1}, v{t2}, 3, v{t1}")
        e(f"v_add_u32 v{t1}, {LDS_W}, v{t1}")
        for t in range(4):
            e(f"v_xor_b32 v{t2}, {t}, v{t0}")
            e(f"v_lshl_add_u32 v{Wa + t}, v{t2}, 6, v{t1}")

        def xload(cc):
            out = []
            for s in range(4 * cc, 4 * cc + 4):
                out.append(lambda S, s=s: S.vmem(f"buffer_load_dwordx4 {vr(X + 4 * s, 4)}, v{Xa}, {sr(sX, 4)}, 0 offen offset:{s * 32}{c['xf']}", ("x", s // 4)))
            return out
        def a_items(w):
            it = []
            so = w["slot"] - LDS_W
            for s in range(4):
                for t in range(4):
                    cin = "0" if (w["c"] == 0 and s == 0) else vr(QA + 16 * t, 16)
                    it.append(dict(rd=[f"ds_read_b64_tr_b16 {{d}}, v{Wa + t} offset:{so + s * 4096 + j * 1024}" for j in range(2)],
                                   mf=f"{MF} {vr(QA + 16 * t, 16)}, {{a}}, {vr(X + 4 * (4 * w['c'] + s), 4)}, {cin}", fill=[]))
            return it
        def d_items(w, acc):
            it = []
            inw = w["slot"] >= LDS_W
            so = w["slot"] - (LDS_W if inw else LDS_KV)
            for s in range(8):
                for t in range(2):
                    cin = "0" if (w["r"] == 0 and s == 0) else vr(acc + 16 * t, 16)
                    it.append(dict(rd=[f"ds_read_b64_tr_b16 {{d}}, v{Wa + t + (0 if inw else 2)} offset:{so + s * 2048 + j * 1024}" for j in range(2)],
                                   mf=f"{MF} {vr(acc + 16 * t, 16)}, {{a}}, {vr(Oreg[w['r']] + 4 * s, 4)}, {cin}", fill=[]))
            return it
        def spread(items, fl, start=0):
            n = len(items) - start
            for i, f in enumerate(fl): items[start + (i * n) // len(fl)]["fill"].append(f)
        def q_write(r):
            for f in range(8):
                b = QA + 8 * f
                for i in range(4): e(f"v_cvt_pk_bf16_f32 v{b + i}, v{b + 2 * i}, v{b + 2 * i + 1}")
                S.ds(f"ds_write_b128 v{H}, {vr(b, 4)} offset:{f * 1024}", "hw")
                if c["dump"]:
                    e(f"s_lshl_b32 s{sT0}, s2, 18"); e(f"s_add_u32 s{sT0}, s{sT0}, {DUMP_OFF - LDS_H + r * 32768 + f * 1024}")
                    S.vmem(f"buffer_store_dwordx4 {vr(b, 4)}, v{H}, {sr(sWs, 4)}, s{sT0} offen", "dump")
            S.drain_ds()
        def o_pick(r):
            for f in range(8): S.ds(f"ds_read_b128 {vr(Oreg[r] + 4 * f, 4)}, v{H} offset:{f * 1024}", ("o", r))
            if c["dump"]:
                S.drain_ds()
                for f in range(8):
                    e(f"s_lshl_b32 s{sT0}, s2, 18"); e(f"s_add_u32 s{sT0}, s{sT0}, {DUMP_OFF - LDS_H + 131072 + r * 32768 + f * 1024}")
                    S.vmem(f"buffer_store_dwordx4 {vr(Oreg[r] + 4 * f, 4)}, v{H}, {sr(sWs, 4)}, s{sT0} offen", "dump")

        LEAD = 3
        for cc in range(LEAD):
            for f in xload(cc) + self.dma_w(W[cc], Wd): f(S)
        issued_w = set(range(LEAD))
        for cc in range(8):
            S.need_vm(("w", cc), ("x", cc))
            e("s_barrier")
            fl = []
            if cc + LEAD < 8:
                fl = xload(cc + LEAD) + self.dma_w(W[cc + LEAD], Wd); issued_w.add(cc + LEAD)
            elif cc == 5: fl = self.dma_k(0) + self.dma_k(1)
            elif cc == 6:
                fl = self.dma_w(self.step_of[0], Wd) + self.dma_k(2); issued_w.add(self.step_of[0]["id"])
            elif cc == 7:
                fl = self.dma_w(self.step_of[1], Wd) + self.dma_k(3); issued_w.add(self.step_of[1]["id"])
            it = a_items(W[cc])
            if cc == 7:
                self.run_items(S, it, 5, AB, 4)
                q_write(0)
                S.need_vm(("kv", 0), ("w", self.step_of[0]["id"]))
                late = fl
            else:
                spread(it, fl)
                self.run_items(S, it, 5, AB, 4)
        self.stamp(S, 1)
        tailpre = {58: 0, 59: 1, 60: 2, 61: 3}
        for k in range(64):
            e("s_barrier")
            fl = []
            if k == 0: fl += late
            if k >= 2 and k + 2 < 64: fl += self.dma_k(k + 2)
            wn = self.step_of.get(k + 2)
            if wn is not None and wn["id"] not in issued_w:
                fl += self.dma_w(wn, Wd); issued_w.add(wn["id"])
            if k in tailpre: fl += self.dma_w(self.tail[tailpre[k]], Wd)
            w = self.step_of.get(k)
            if w is not None:
                if w["kind"] == "A": it = a_items(w)
                else:
                    it = d_items(w, ACC[(w["t"] - 1) % 3]); S.need_ds(("o", w["r"]))
                spread(it, fl)
                self.run_items(S, it, 5, AB, 4)
            else:
                for f in fl: f(S)
            if k == 11: q_write(1)
            if k == 17: o_pick(0); S.drain_ds()
            if k == 23: q_write(2)
            if k == 35:
                o_pick(1); q_write(3)
                self.lane_id(S, t2)
                self.wo_lane_addr(S, t2, Wd, t0, t1)
                e(f"v_bfe_u32 v{t0}, v{t2}, 2, 2")
                e(f"v_lshrrev_b32 v{t1}, 5, v{t2}")
                e(f"v_lshl_add_u32 v{t1}, v{t1}, 2, v{t0}")
                e(f"v_lshlrev_b32 v{t1}, 7, v{t1}")
                e(f"v_bfe_u32 v{t0}, v{t2}, 4, 1"); e(f"v_lshl_add_u32 v{t1}, v{t0}, 5, v{t1}")
                e(f"v_and_b32 v{t0}, 1, v{t2}"); e(f"v_lshl_add_u32 v{t1}, v{t0}, 4, v{t1}")
                e(f"v_bfe_u32 v{t0}, v{t2}, 1, 1"); e(f"v_lshl_add_u32 v{t1}, v{t0}, 3, v{t1}")
                e(f"v_bfe_u32 v{t0}, v{t2}, 3, 1")
                e(f"v_lshl_add_u32 v{Wa + 2}, v{t0}, 6, v{t1}")
                e(f"v_xor_b32 v{Wa + 3}, 64, v{Wa + 2}")
                e(f"v_add_u32 v{Wa}, {LDS_W}, v{Wa + 2}")
                e(f"v_add_u32 v{Wa + 1}, {LDS_W}, v{Wa + 3}")
                self.xch_lane_addr(S, t2, Xa, t0, t1)
                if c["wopf"]:
                    e(f"s_lshr_b32 s{sT0}, s{sM}, 1"); e(f"s_lshl_b32 s{sT0}, s{sT0}, 20")
                    e(f"s_lshl_b32 s{sT1}, s{sIdx}, 15"); e(f"s_add_u32 s{sT0}, s{sT0}, s{sT1}")
                    e(f"s_lshl_b32 s{sT1}, s{sW}, 13"); e(f"s_add_u32 s{sT0}, s{sT0}, s{sT1}")
                    e(f"v_lshlrev_b32 v{t0}, 7, v{t2}")
                    S.vmem(f"buffer_load_dword v{t1}, v{t0}, {sr(sWo, 4)}, s{sT0} offen{c['wf']}", "pf")
            if k == 48: o_pick(2); S.drain_ds()
            if k == 54:
                e(f"s_lshl_b32 s{sT0}, s{sCl}, 3"); e(f"v_mov_b32 v{t2}, 0")
                S.vmem(f"buffer_load_dwordx2 {vr(AB, 2)}, v{t2}, {sr(sDbg, 4)}, s{sT0} offen sc1", "chk")
                S.drain_vm()
                e(f"s_mov_b32 s{sSpin}, 0")
                S.label("L_chk")
                e(f"v_and_b32 v{AB}, v{AB}, v{AB + 1}")
                e(f"v_cmp_ne_u32 vcc, 0x01010101, v{AB}")
                e("s_cbranch_vccz L_chk_ok")
                e(f"s_add_u32 s{sSpin}, s{sSpin}, 1"); e(f"s_cmp_gt_u32 s{sSpin}, 0x40000"); e("s_cbranch_scc1 L_chk_ok")
                e("s_sleep 8")
                e(f"buffer_load_dwordx2 {vr(AB, 2)}, v{t2}, {sr(sDbg, 4)}, s{sT0} offen sc1")
                e("s_waitcnt vmcnt(0)")
                e("s_branch L_chk")
                S.label("L_chk_ok")
            need = [("kv", k + 1)]
            if k + 1 in self.step_of: need.append(("w", self.step_of[k + 1]["id"]))
            S.need_vm(*need)
            if k in (15, 31, 47): self.stamp(S, 2 + k // 16)
        S.drain_vm()
        e(f"s_lshl_b32 s{sXb}, s{sCl}, 20"); e(f"s_add_u32 s{sXb}, s{sXb}, s{sW4k}")
        e(f"s_lshl_b32 s{sFb}, s{sCl}, 12"); e(f"s_lshl_b32 s{sT0}, s{sW}, 7"); e(f"s_add_u32 s{sFb}, s{sFb}, s{sT0}")
        e(f"s_add_u32 s{sFb}, s{sFb}, {FLAG_OFF}")
        self.lane_id(S, t2)
        e(f"v_mov_b32 v{t0}, {OOB}"); e(f"v_cmp_eq_u32 vcc, 0, v{t2}"); e(f"v_cndmask_b32 v{t1}, v{t0}, v{t2}, vcc")
        e(f"v_mov_b32 v{t0}, 1")
        self.stamp(S, 5)
        e("s_barrier")
        if c["prio"]: e("s_setprio 2")
        o_pick(3)
        self.stamp(S, 6)
        items = []
        ends = {}
        for w in self.tail:
            it = d_items(w, ACC[(w["t"] - 1) % 3])
            if w["n"] in self.tbars: it[0]["pre"] = lambda S: S.e("s_barrier")
            if w["r"] == 3 and not any(x["r"] == 3 for x in self.tail[:w["n"]]):
                it[0]["premf"] = lambda S: S.need_ds(("o", 3))
            items += it
            if w["r"] == 3: ends[w["t"]] = len(items)
        post = []
        for t in range(1, 8):
            acc = ACC[(t - 1) % 3]
            pos = ends[t] + 2
            for j in range(4):
                def cv(S, j=j, acc=acc):
                    b = acc + 8 * j
                    for i in range(4): S.e(f"v_cvt_pk_bf16_f32 v{b + i}, v{b + 2 * i}, v{b + 2 * i + 1}")
                def st(S, j=j, acc=acc, t=t):
                    if j == 0:
                        S.e(f"s_add_u32 s{sT0}, s{sM}, {t}"); S.e(f"s_and_b32 s{sT0}, s{sT0}, 7"); S.e(f"s_lshl_b32 s{sT0}, s{sT0}, 17")
                        S.e(f"s_add_u32 s{sT0}, s{sT0}, {XCH_OFF + t * 16384}"); S.e(f"s_add_u32 s{sSo}, s{sT0}, s{sXb}")
                    S.vmem(f"buffer_store_dwordx4 {vr(acc + 8 * j, 4)}, v{Xa}, {sr(sWs, 4)}, s{sSo} offen offset:{j * 896} sc1", ("st", t))
                items[pos + 2 * j]["fill"].append(cv)
                items[pos + 2 * j + 1]["fill"].append(st)
            def fg(S, t=t):
                S.e(f"s_add_u32 s{sT0}, s{sM}, {t}"); S.e(f"s_and_b32 s{sT0}, s{sT0}, 7"); S.e(f"s_lshl_b32 s{sT0}, s{sT0}, 9")
                S.e(f"s_add_u32 s{sT0}, s{sT0}, s{sFb}")
                S.need_vm(("st", t))
                S.vmem(f"buffer_store_dword v{t0}, v{t1}, {sr(sWs, 4)}, s{sT0} offen offset:{t * 4} sc1", "fl")
            p = pos + 8 + c["flaglag"]
            if p < len(items): items[p]["fill"].append(fg)
            else: post.append(fg)
        self.run_items(S, items, 5, AB, 4)
        for f in post: f(S)
        acc = ACC[7 % 3]
        for j in range(8): S.ds(f"ds_write_b128 v{H}, {vr(acc + 4 * j, 4)} offset:{j * 1024}", "hw")
        S.drain_ds()
        self.stamp(S, 7)
        e("s_barrier")
        S.drain_vm()
        self.prof_dump(S, 4, 253)
        e("s_endpgm")
        return S.L

    def prof_dump(self, S, wave, v):
        if not self.c["prof"]: return
        e = S.e
        e(f"s_cmp_lg_u32 s{sWave}, {wave}"); e(f"s_cbranch_scc1 L_noprof{wave}")
        e(f"s_lshl_b32 s{sT0}, s2, 7"); e(f"s_add_u32 s{sT0}, s{sT0}, {PROF_OFF + (64 if wave else 0)}")
        e(f"v_mov_b32 v{v}, 0"); e("s_mov_b64 exec, 1")
        for i in range(16):
            e(f"v_mov_b32 v{v + 1}, s{sProf + 2 * i}")
            e(f"buffer_store_dword v{v + 1}, v{v}, {sr(sWs, 4)}, s{sT0} offen offset:{4 * i}")
        e("s_waitcnt vmcnt(0)")
        S.label(f"L_noprof{wave}")

    def att(self):
        c = self.c
        S = Stream(); e = S.e
        Q, O, Sx, P, AB = 8, 40, 104, 136, 152
        Ka, Va, H = 216, 224, 228
        Mc, L0, L1, MxA, MxB, T0, T1 = 229, 230, 231, 232, 233, 234, 235
        Wd, Xa, Oa, Fa = 240, 241, 242, 243
        S.label("L_att")
        e(f"s_lshl_b32 s{sFb}, s{sCl}, 3"); e(f"s_add_u32 s{sFb}, s{sFb}, s{sM}")
        e(f"s_lshl_b32 s{sXb}, s{sFb}, 17"); e(f"s_add_u32 s{sXb}, s{sXb}, s{sW4k}")
        e(f"s_mov_b32 s{sT3}, s{sFb}")
        e(f"s_lshl_b32 s{sFb}, s{sFb}, 9"); e(f"s_add_u32 s{sFb}, s{sFb}, {FLAG_OFF}")
        e(f"s_cmp_lg_u32 s{sWave}, 0"); e("s_cbranch_scc1 L_noinit")
        e("v_lshlrev_b32 v1, 3, v0"); e("v_mov_b32 v2, 0"); e("v_mov_b32 v3, 0")
        e(f"buffer_store_dwordx2 v[2:3], v1, {sr(sWs, 4)}, s{sFb} offen sc1")
        S.label("L_noinit")
        if c["codepf"]:
            e(f"s_cmp_lg_u32 s{sWave}, 1"); e("s_cbranch_scc1 L_nopf")
            e("s_getpc_b64 s[68:69]")
            S.label("L_pc")
            e(f"s_sub_u32 s68, s68, L_pc-{KNAME}"); e("s_subb_u32 s69, s69, 0")
            e(f"s_lshl_b32 s{sT0}, s{sIdx}, 11")
            e(f"v_and_b32 v1, 15, v0"); e("v_lshlrev_b32 v1, 7, v1"); e(f"v_add_u32 v1, s{sT0}, v1")
            e(f"v_min_u32 v1, L_end-{KNAME}, v1")
            e("global_load_dword v2, v1, s[68:69]")
            S.label("L_nopf")
        e(f"s_lshl_b32 s{sT0}, s{sW}, 7"); e(f"s_add_u32 s{sFb}, s{sFb}, s{sT0}")
        e("v_and_b32 v4, 31, v0"); e("v_lshlrev_b32 v4, 8, v4")
        e("v_lshrrev_b32 v5, 5, v0"); e("v_and_b32 v6, 15, v0"); e("v_xor_b32 v5, v5, v6")
        for s in range(8):
            e(f"v_xor_b32 v6, {2 * s}, v5"); e(f"v_lshl_add_u32 v{Ka + s}, v6, 4, v4")
        e("v_bfe_u32 v4, v0, 2, 2"); e("v_lshrrev_b32 v5, 5, v0"); e("v_lshl_add_u32 v5, v5, 2, v4"); e("v_lshlrev_b32 v5, 8, v5")
        e("v_bfe_u32 v6, v0, 4, 1"); e("v_lshl_add_u32 v5, v6, 5, v5")
        e("v_and_b32 v6, 3, v0"); e("v_lshl_add_u32 v5, v6, 3, v5")
        for t in range(4):
            e(f"v_xor_b32 v6, {t}, v4"); e(f"v_lshl_add_u32 v{Va + t}, v6, 6, v5")
        e(f"s_lshl_b32 s{sT0}, s{sW}, 13"); e(f"s_add_u32 s{sT0}, s{sT0}, {LDS_H}")
        e(f"v_lshlrev_b32 v{H}, 4, v0"); e(f"v_add_u32 v{H}, s{sT0}, v{H}")
        self.wo_lane_addr(S, 0, Wd, 4, 5)
        self.xch_lane_addr(S, 0, Xa, 4, 5)
        e(f"s_mul_i32 s{sT0}, s{sB}, 112"); e(f"s_mul_i32 s{sT1}, s{sW}, 28"); e(f"s_add_u32 s{sT0}, s{sT0}, s{sT1}")
        e("v_and_b32 v4, 31, v0"); e(f"v_add_u32 v5, s{sT0}, v4"); e("v_lshlrev_b32 v5, 11, v5")
        e("v_lshrrev_b32 v6, 5, v0"); e("v_lshl_add_u32 v5, v6, 4, v5")
        e(f"s_lshl_b32 s{sT0}, s{sBr}, 10"); e(f"s_lshl_b32 s{sT1}, s{sOwn}, 7"); e(f"s_add_u32 s{sT0}, s{sT0}, s{sT1}")
        e(f"v_add_u32 v5, s{sT0}, v5"); e("v_cmp_gt_u32 vcc, 28, v4"); e(f"v_mov_b32 v6, {OOB}")
        e(f"v_cndmask_b32 v{Oa}, v6, v5, vcc")
        e(f"v_lshlrev_b32 v{Fa}, 2, v0")
        for i in range(64): e(f"v_mov_b32 v{O + i}, 0")
        e(f"v_mov_b32 v{L0}, 0"); e(f"v_mov_b32 v{L1}, 0"); e(f"v_mov_b32 v{Mc}, 0xff800000")
        if c["prio"]: e("s_setprio 2")
        for cc in range(8): e("s_barrier")
        e(f"s_mov_b32 s{sHead}, 0")
        rare = []

        def pend(S):
            for t in range(4):
                S.e(f"{MF} {vr(O + 16 * t, 16)}, {vr(AB + 4 * (12 + t), 4)}, {vr(P + 12, 4)}, {vr(O + 16 * t, 16)}")
                for i in range(2):
                    l = (L0, L1)[i]
                    S.e(f"v_add_f32 v{l}, v{l}, v{Sx + 24 + 2 * t + i}")
        def sm(g):
            b = Sx + 8 * g
            ops = []
            for i in range(8): ops.append(f"v_fma_f32 v{b + i}, v{b + i}, s{sC}, -v{Mc}")
            ex = [f"v_exp_f32 v{b + i}, v{b + i}" for i in range(8)]
            cv = [f"v_cvt_pk_bf16_f32 v{P + 4 * g + i}, v{b + 2 * i}, v{b + 2 * i + 1}" for i in range(4)]
            o = [ops[0], ops[1], ex[0], ops[2], ex[1], ops[3], ex[2], ops[4], ex[3], cv[0], ops[5], ex[4], ops[6], ex[5], cv[1], ops[7], ex[6], ex[7], cv[2], cv[3]]
            return o
        def pair(pi, first_q):
            ko, vo = LDS_KV + 2 * pi * 16384, LDS_KV + (2 * pi + 1) * 16384
            def kr(i): S.ds(f"ds_read_b128 {vr(AB + 4 * i, 4)}, v{Ka + i % 8} offset:{ko + (i // 8) * 8192}", ("k", i))
            def vrd(i):
                s, t = i // 4, i % 4
                for j in range(2): S.ds(f"ds_read_b64_tr_b16 {vr(AB + 4 * i + 2 * j, 2)}, v{Va + t} offset:{vo + s * 4096 + j * 2048}", ("v", i))
            e("s_barrier")
            for i in range(8): kr(i)
            if pi == 0:
                e(f"s_cmp_eq_u32 s{sLoop}, 0"); e("s_cbranch_scc1 L_first")
            pend(S)
            if pi == 0:
                S.label("L_nofirst")
            for s in range(8):
                S.need_ds(("k", s))
                e(f"{MF} {vr(Sx, 16)}, {vr(AB + 4 * s, 4)}, {vr(Q + 4 * s, 4)}, {'0' if s == 0 else vr(Sx, 16)}")
                kr(8 + s)
            mx = [f"v_max3_f32 v{MxA}, v{Sx}, v{Sx + 1}, v{Sx + 2}", f"v_max3_f32 v{MxB}, v{Sx + 3}, v{Sx + 4}, v{Sx + 5}"]
            for i in range(5): mx.append(f"v_max3_f32 v{(MxA, MxB)[i % 2]}, v{(MxA, MxB)[i % 2]}, v{Sx + 6 + 2 * i}, v{Sx + 7 + 2 * i}")
            bt = c["bar_t1"]
            nv = 0
            for s in range(8):
                if s == bt: e("s_barrier")
                S.need_ds(("k", 8 + s))
                e(f"{MF} {vr(Sx + 16, 16)}, {vr(AB + 4 * (8 + s), 4)}, {vr(Q + 4 * s, 4)}, {'0' if s == 0 else vr(Sx + 16, 16)}")
                if s >= bt and nv < 6: vrd(nv); nv += 1
                if s >= 4:
                    for x in mx[2 * (s - 4):2 * (s - 4) + 2]: e(x)
            while nv < 6: vrd(nv); nv += 1
            for i in range(8): e(f"v_max3_f32 v{(MxB, MxA)[i % 2]}, v{(MxB, MxA)[i % 2]}, v{Sx + 16 + 2 * i}, v{Sx + 17 + 2 * i}")
            e(f"v_max_f32 v{MxA}, v{MxA}, v{MxB}")
            e(f"v_fma_f32 v{T0}, v{MxA}, s{sC}, -v{Mc}")
            e(f"v_cmp_lt_f32 vcc, 0x41000000, v{T0}")
            e(f"s_cbranch_vccnz L_rare{pi}")
            S.label(f"L_back{pi}")
            R = []
            R.append(f"L_rare{pi}:")
            R += [f"v_mov_b32 v{T0}, v{MxA}", f"v_permlane32_swap_b32 v{MxA}, v{T0}", f"v_max_f32 v{MxA}, v{MxA}, v{T0}",
                  f"v_mul_f32 v{MxA}, s{sC}, v{MxA}", f"v_max_f32 v{MxA}, v{MxA}, v{Mc}", f"v_sub_f32 v{T0}, v{Mc}, v{MxA}",
                  f"v_exp_f32 v{T0}, v{T0}", f"v_mov_b32 v{Mc}, v{MxA}", f"v_mul_f32 v{L0}, v{L0}, v{T0}", f"v_mul_f32 v{L1}, v{L1}, v{T0}"]
            R += [f"v_mul_f32 v{O + i}, v{O + i}, v{T0}" for i in range(64)]
            R += ["s_nop 1", f"s_branch L_back{pi}"]
            rare.extend(R)
            for x in sm(0): e(x)
            for g in range(3):
                ops = sm(g + 1)
                adds = [f"v_add_f32 v{(L0, L1)[i % 2]}, v{(L0, L1)[i % 2]}, v{Sx + 8 * g + i}" for i in range(8)]
                ops = ops + adds
                for t in range(4):
                    i = 4 * g + t
                    S.need_ds(("v", i))
                    e(f"{MF} {vr(O + 16 * t, 16)}, {vr(AB + 4 * i, 4)}, {vr(P + 4 * g, 4)}, {vr(O + 16 * t, 16)}")
                    if nv < 16: vrd(nv); nv += 1
                    for x in ops[7 * t:7 * t + 7]: e(x)
            S.drain_ds()

        S.label("L_head")
        e(f"s_mov_b32 s{sLoop}, 0")
        S.label("L_loop")
        pair(0, True)
        pair(1, False)
        e(f"s_add_u32 s{sLoop}, s{sLoop}, 1"); e(f"s_cmp_lt_u32 s{sLoop}, 4"); e("s_cbranch_scc1 L_loop")
        for f in range(8): S.ds(f"ds_read_b128 {vr(Q + 4 * f, 4)}, v{H} offset:{f * 1024}", "q")
        pend(S)
        e(f"v_add_f32 v{L0}, v{L0}, v{L1}")
        e(f"v_mov_b32 v{T0}, v{L0}")
        e(f"v_permlane32_swap_b32 v{L0}, v{T0}")
        e(f"v_add_f32 v{L0}, v{L0}, v{T0}")
        e(f"v_rcp_f32 v{T0}, v{L0}")
        e(f"v_mov_b32 v{Mc}, 0xff800000")
        for f in range(8):
            b = O + 8 * f; d = Sx + 4 * f
            for i in range(8): e(f"v_mul_f32 v{b + i}, v{b + i}, v{T0}")
            for i in range(4): e(f"v_cvt_pk_bf16_f32 v{d + i}, v{b + 2 * i}, v{b + 2 * i + 1}")
            S.ds(f"ds_write_b128 v{H}, {vr(d, 4)} offset:{f * 1024}", "hw")
        e(f"s_or_b32 s{sT0}, s{sHead}, s{sWave}"); e(f"s_cmp_lg_u32 s{sT0}, 0"); e("s_cbranch_scc1 L_noann")
        e(f"v_mov_b32 v{T0}, {OOB}"); e("v_cmp_eq_u32 vcc, 0, v0"); e(f"v_cndmask_b32 v{T0}, v{T0}, v0, vcc"); e(f"v_mov_b32 v{T1}, 1")
        e("s_waitcnt vmcnt(0)")
        e(f"buffer_store_byte v{T1}, v{T0}, {sr(sDbg, 4)}, s{sT3} offen sc1")
        S.label("L_noann")
        S.drain_ds(force=True)
        e(f"s_add_u32 s{sHead}, s{sHead}, 1"); e(f"s_cmp_lt_u32 s{sHead}, 4"); e("s_cbranch_scc1 L_head")
        S.drain_vm(force=True)
        self.stamp(S, 5)
        e("s_barrier")
        if c["prio"]: e("s_setprio 0")
        NT = len(self.tail)
        nxt = 4
        def issue_upto(n):
            nonlocal nxt
            while nxt <= min(n, NT - 1):
                for f in self.dma_w(self.tail[nxt], Wd): f(S)
                nxt += 1
        issue_upto(7)
        for bi, n in enumerate(self.tbars):
            hi = self.tbars[bi + 1] if bi + 1 < len(self.tbars) else NT
            assert nxt >= hi, (n, hi, nxt)
            S.need_vm(*[("w", self.tail[i]["id"]) for i in range(hi)])
            e("s_barrier")
            issue_upto(n + 6)
        self.stamp(S, 6)
        IN, SUM, OWN = 40, 152, 184
        t0 = 0
        first = True
        def accum(t):
            nonlocal first
            for j in range(4):
                S.need_vm(("in", t, j))
                for i in range(4):
                    src = IN + 16 * (t - 1) + 4 * j + i; d = SUM + 8 * j + 2 * i
                    if first:
                        e(f"v_lshlrev_b32 v{d}, 16, v{src}"); e(f"v_and_b32 v{d + 1}, 0xffff0000, v{src}")
                    else:
                        e(f"v_lshlrev_b32 v{T0}, 16, v{src}"); e(f"v_and_b32 v{T1}, 0xffff0000, v{src}")
                        e(f"v_add_f32 v{d}, v{d}, v{T0}"); e(f"v_add_f32 v{d + 1}, v{d + 1}, v{T1}")
            first = False
        for si, t1 in enumerate(c["stage"]):
            mask = ((1 << (t1 + 1)) - 1) & ~((1 << (t0 + 1)) - 1)
            e(f"s_mov_b32 s{sSpin}, 0")
            e(f"s_mov_b64 exec, {mask}")
            S.label(f"L_poll{si}")
            e(f"buffer_load_dword v{T0}, v{Fa}, {sr(sWs, 4)}, s{sFb} offen sc1")
            S.drain_vm(force=True)
            e(f"v_cmp_ne_u32 vcc, 1, v{T0}")
            e(f"s_cbranch_vccz L_polled{si}")
            e(f"s_add_u32 s{sSpin}, s{sSpin}, 1"); e(f"s_cmp_gt_u32 s{sSpin}, 0x40000"); e(f"s_cbranch_scc1 L_polled{si}")
            e("s_sleep 2")
            e(f"s_branch L_poll{si}")
            S.label(f"L_polled{si}")
            e("s_mov_b64 exec, -1")
            for t in range(t0 + 1, t1 + 1):
                e(f"s_add_u32 s{sSo}, s{sXb}, {XCH_OFF + t * 16384}")
                for j in range(4):
                    S.vmem(f"buffer_load_dwordx4 {vr(IN + 16 * (t - 1) + 4 * j, 4)}, v{Xa}, {sr(sWs, 4)}, s{sSo} offen offset:{j * 896} sc1", ("in", t, j))
            for t in range(t0 + 1, t1 + 1): accum(t)
            t0 = t1
        self.stamp(S, 7)
        e("s_barrier")
        for j in range(8): S.ds(f"ds_read_b128 {vr(OWN + 4 * j, 4)}, v{H} offset:{j * 1024}", ("own", j // 2))
        for j in range(4):
            S.need_ds(("own", j))
            for i in range(8): e(f"v_add_f32 v{SUM + 8 * j + i}, v{SUM + 8 * j + i}, v{OWN + 8 * j + i}")
            for i in range(4): e(f"v_cvt_pk_bf16_f32 v{SUM + 8 * j + i}, v{SUM + 8 * j + 2 * i}, v{SUM + 8 * j + 2 * i + 1}")
            S.vmem(f"buffer_store_dwordx4 {vr(SUM + 8 * j, 4)}, v{Oa}, {sr(sOut, 4)}, 0 offen offset:{j * 32}", "out")
        if c["prof"]:
            S.drain_vm(); self.stamp(S, 8); self.prof_dump(S, 0, 4)
        e("s_endpgm")
        S.label("L_first")
        e(f"s_cmp_lg_u32 s{sHead}, 0"); e("s_cbranch_scc1 L_nofirst")
        e("s_waitcnt lgkmcnt(0)")
        for f in range(8): e(f"ds_read_b128 {vr(Q + 4 * f, 4)}, v{H} offset:{f * 1024}")
        e("s_waitcnt lgkmcnt(0)")
        e("s_branch L_nofirst")
        return S.L + rare

    def build(self):
        self.make_schedule()
        rep = []
        body = pad_hazards(self.entry() + self.proj(), rep) + pad_hazards(self.att(), rep)
        self.nops = rep
        hdr = open("header.txt").read().rstrip("\n").split("\n")
        L = hdr + ["; @launch grid=(256,1,1) block=(512,1,1) lds=163840",
                   '.amdgcn_target "amdgcn-amd-amdhsa--gfx950"', ".text", f".globl {KNAME}", ".p2align 8",
                   f".type {KNAME},@function", f"{KNAME}:"]
        L += [("    " + x if not x.endswith(":") else x) for x in body]
        L += ["L_end:", "    s_endpgm", '.section .rodata,"a"', ".p2align 6", f".amdhsa_kernel {KNAME}",
              "  .amdhsa_next_free_vgpr 256", "  .amdhsa_next_free_sgpr 102", "  .amdhsa_accum_offset 256",
              "  .amdhsa_group_segment_fixed_size 0", "  .amdhsa_kernarg_size 104", "  .amdhsa_user_sgpr_count 2",
              "  .amdhsa_user_sgpr_kernarg_segment_ptr 1", "  .amdhsa_system_sgpr_workgroup_id_x 1",
              "  .amdhsa_float_denorm_mode_32 3", ".end_amdhsa_kernel"]
        return "\n".join(L) + "\n"

if __name__ == "__main__":
    import ast
    out = sys.argv[1]
    kw = {}
    for a in sys.argv[2:]:
        k, v = a.split("=", 1); kw[k] = ast.literal_eval(v)
    g = Gen(**kw)
    open(out, "w").write(g.build())
    print("nops inserted:", len(g.nops), "tail barriers", g.tbars)
    for n in g.nops: print("  ", n)
```

```python
import sys, math, struct
sys.path.insert(0, "work")
from asmlib import *

KNAME = "concat_heads__mha_block_cached__mha_block_cached__near_ridge_kernel"
MF = "v_mfma_f32_32x32x16_bf16"
WS_BYTES = 288882688
XCH_OFF = 0
FLAG_OFF = 0x2000000
PROF_OFF = 0x2100000
DUMP_OFF = 0x3000000
LDS_KV, LDS_W, LDS_H = 0, 65536, 131072
OOB = 0x7fff0000

sK, sV, sWq, sWo, sWs, sX, sOut, sDbg = 8, 12, 16, 20, 24, 28, 32, 36
sBr, sB, sM, sCl, sIdx = 3, 4, 5, 6, 7
sWave, sW = 42, 43
sH, sKVb = 44, 48
sOwn, sC = 52, 53
sT0, sT1, sT2, sT3 = 56, 57, 58, 59
sSo = 60
sW1k, sW4k = 61, 62
sLoop, sHead = 63, 64
sXb, sFb = 65, 66
sSpin = 67
sProf = 70

sSw = 40
sRot, sW2k = 41, 2
sWg = 54
sC2 = 68
DEF = dict(D=3, rot=True, npre=3, prof=False, dump=False, kvf=" nt", wf="", xf="", bar_t1=0, G=2, flaglag=40,
           codepf=True, wopf=2, strict=False, prio=True, stage=(6, 7), last_bar=5, fine=False, nvb=4, krot=4, nbig=24, nlast=24, lead=12, wcap=3, plead=6, pk=True, rcv=((8, 3), (12, 4), (16, 5)))

def fbits(x):
    return struct.unpack("<I", struct.pack("<f", x))[0]

class Gen:
    def __init__(self, **kw):
        self.c = dict(DEF); self.c.update(kw)

    def stamp(self, S, i):
        if self.c["prof"]:
            S.e(f"s_memrealtime {sr(sProf + 2*i, 2)}")
            S.drain_ds(force=True)

    def dma_k(self, k):
        slot = LDS_KV + (k % 4) * 16384
        f = self.c["kvf"]
        out = []
        if k < 64:
            for i in range(2):
                def g(S, i=i):
                    S.e(f"s_add_u32 m0, s{sW1k}, {slot + i * 4096}")
                    S.e(f"s_xor_b32 s{sSo}, s{sKVb + k // 16}, {(k % 16) * 8192 + i * 4096}")
                    S.vmem(f"buffer_load_dwordx4 v{self.pKd}, {sr(sK, 4)}, s{sSo} offen{f} lds", ("kv", k))
                out.append(g)
        if k >= 1:
            for i in range(2):
                def g(S, i=i):
                    if i == 0:
                        S.e(f"s_add_u32 m0, s{sW2k}, {slot + 8192}")
                        S.e(f"s_xor_b32 s{sSo}, s{sKVb + (k - 1) // 16}, {((k - 1) % 16) * 8192}")
                    S.vmem(f"buffer_load_dwordx4 v{self.pVd}, {sr(sV, 4)}, s{sSo} offen offset:{i * 1024}{f} lds", ("kv", k))
                out.append(g)
        return out

    def dma_w(self, w, vreg):
        f = self.c["wf"]
        out = []
        for i in range(4):
            def g(S, i=i):
                if i % 2 == 0: S.e(f"s_add_u32 m0, s{sW4k}, {w['slot']}")
                if i == 0:
                    if w["kind"] == "A":
                        S.e(f"s_lshl_b32 s{sSw}, s{sH + w['r']}, 8")
                        S.e(f"s_xor_b32 s{sT0}, s{sRot}, {((w['c'] % 4) << 20) | ((w['c'] // 4) << 7)}")
                        S.e(f"s_add_u32 s{sSw}, s{sSw}, s{sT0}")
                    else:
                        S.e(f"s_add_u32 s{sT0}, s{sOwn}, {w['t']}")
                        S.e(f"s_and_b32 s{sT0}, s{sT0}, 7")
                        S.e(f"s_lshl_b32 s{sT0}, s{sT0}, 7")
                        S.e(f"s_lshl_b32 s{sSw}, s{sH + w['r']}, 17")
                        S.e(f"s_add_u32 s{sSw}, s{sSw}, s{sT0}")
                elif w["kind"] == "A": S.e(f"s_add_u32 s{sSw}, s{sSw}, 64512")
                else: S.e(f"s_addk_i32 s{sSw}, 7168")
                srd = sWq if w["kind"] == "A" else sWo
                S.vmem(f"buffer_load_dwordx4 v{vreg}, {sr(srd, 4)}, s{sSw} offen offset:{i * 1024}{f} lds", ("w", w["id"]))
            out.append(g)
        return out

    def run_items(self, S, items, nbuf, bufbase, RA):
        n = len(items)
        def issue(i):
            it = items[i]
            if it.get("pre"): it["pre"](S)
            b = bufbase + (i % nbuf) * 4
            if len(it["rd"]) == 1:
                S.ds(it["rd"][0].format(d=vr(b, 4)), ("a", id(items), i))
            else:
                for j, t in enumerate(it["rd"]):
                    S.ds(t.format(d=vr(b + 2 * j, 2)), ("a", id(items), i))
        for i in range(min(RA, n)): issue(i)
        for i in range(n):
            it = items[i]
            if it.get("premf"): it["premf"](S)
            S.need_ds(("a", id(items), i))
            S.e(it["mf"].format(a=vr(bufbase + (i % nbuf) * 4, 4)))
            if i + RA < n: issue(i + RA)
            for f in it.get("fill", []): f(S)

    def wo_lane_addr(self, S, lane, dst, t0, t1, sh=10):
        S.e(f"v_lshrrev_b32 v{t0}, 3, v{lane}")
        S.e(f"v_lshlrev_b32 v{dst}, {sh}, v{t0}")
        S.e(f"v_lshrrev_b32 v{t0}, 2, v{lane}")
        S.e(f"v_and_b32 v{t0}, 4, v{t0}")
        S.e(f"v_and_b32 v{t1}, 7, v{lane}")
        S.e(f"v_xor_b32 v{t0}, v{t0}, v{t1}")
        S.e(f"v_lshl_add_u32 v{dst}, v{t0}, 4, v{dst}")
        S.e(f"s_lshl_b32 s{sT0}, s{sW}, {sh + 5}")
        S.e(f"v_add_u32 v{dst}, s{sT0}, v{dst}")

    def lane_id(self, S, dst):
        S.e(f"v_mbcnt_lo_u32_b32 v{dst}, -1, 0")
        S.e(f"v_mbcnt_hi_u32_b32 v{dst}, -1, v{dst}")

    def xch_lane_addr(self, S, lane, dst, t0, t1):
        S.e(f"v_lshrrev_b32 v{t0}, 5, v{lane}")
        S.e(f"v_and_b32 v{t1}, 31, v{lane}")
        S.e(f"v_mul_u32_u24 v{t0}, 28, v{t0}")
        S.e(f"v_add_lshl_u32 v{dst}, v{t0}, v{t1}, 4")
        S.e(f"v_cmp_gt_u32 vcc, 28, v{t1}")
        S.e(f"v_mov_b32 v{t0}, {OOB}")
        S.e(f"v_cndmask_b32 v{dst}, v{t0}, v{dst}, vcc")

    def make_schedule(self):
        c = self.c
        W = []
        def add(**kw):
            kw["id"] = len(W); kw["slot"] = LDS_W + (kw["id"] % 4) * 16384; W.append(kw); return kw
        for r in range(4):
            for cc in range(8): add(kind="A", r=r, c=cc)
        npre = c["npre"]
        for r in range(3):
            for t in range(1, npre + 1): add(kind="D", t=t, r=r)
        self.main = W[8:]
        nm = len(self.main)
        assert nm <= 33
        n = [0] * 65
        big, lead = c["nbig"], c["lead"]
        tgt = {15: 128 + lead, 31: 256 + lead, 47: min(384 + lead, 16 * nm), 64: 16 * nm}
        done = 0; k0 = 0
        for k1 in (15, 31, 47, 64):
            ks_ = list(range(k0, k1 + 1))
            sp = {k: big for k in ks_ if k % 16 == 1 and k > 1}
            if k1 == 64: sp[64] = c["nlast"]
            rem = tgt[k1] - done
            for k in sp: sp[k] = min(sp[k], rem); rem -= sp[k]
            pl = [k for k in ks_ if k not in sp]
            for i, k in enumerate(pl): n[k] = (rem * (i + 1)) // len(pl) - (rem * i) // len(pl)
            for k in sp: n[k] = sp[k]
            done = tgt[k1]; k0 = k1 + 1
        self.nit = n
        cum = 0; step_of_item = []
        for k in range(65): step_of_item += [k] * n[k]
        self.step_of_item = step_of_item
        for j, w in enumerate(self.main):
            w["first"] = step_of_item[max(16 * j - 4, 0)]
            w["last"] = step_of_item[16 * j + 15]
        tail = []
        for t in range(1, 9):
            for r in ([3] if t <= npre else [0, 1, 2, 3]): tail.append(add(kind="D", t=t, r=r))
        ws = lambda i: LDS_W + ((8 + nm + i) % 4) * 16384
        ks = lambda i: LDS_KV + i * 16384
        ring = [ws(0), ks(1), ks(2), ws(1), ks(3), ws(2), ks(0), ws(3)]
        for n, w in enumerate(tail): w["slot"] = ring[n % 8]; w["n"] = n
        self.W, self.tail = W, tail
        self.propub = [0, 1, 2, 3, 3, 4, 5, 6]
        for w in self.main:
            if w["kind"] == "D": assert w["first"] > (18, 34, 50)[w["r"]], w
        G = c["G"]; NT = len(tail)
        lb = NT - c["last_bar"]
        self.tbars = [n for n in range(2, NT, G) if n < lb] + [lb]

    def entry(self):
        S = Stream(); e = S.e
        e("s_cmp_ge_u32 s2, 256"); e("s_cbranch_scc1 L_end")
        if self.c["prof"]: e(f"s_memrealtime {sr(sProf, 2)}"); e(f"s_memtime {sr(sProf + 18, 2)}")
        e(f"s_and_b32 s{sT0}, s2, 7")
        e(f"s_lshr_b32 s{sBr}, s{sT0}, 2")
        e(f"s_mul_i32 s{sT1}, s{sBr}, 40")
        e(f"s_add_u32 s40, s0, s{sT1}"); e("s_addc_u32 s41, s1, 0")
        e(f"s_load_dwordx2 {sr(sX, 2)}, s[40:41], 0")
        e(f"s_load_dwordx2 {sr(sWq, 2)}, s[40:41], 24")
        e(f"s_load_dwordx2 {sr(sK, 2)}, s[40:41], 8")
        e(f"s_load_dwordx2 {sr(sV, 2)}, s[40:41], 16")
        e(f"s_load_dwordx2 {sr(sWo, 2)}, s[40:41], 32")
        e(f"s_load_dwordx2 {sr(sOut, 2)}, s[0:1], 80")
        e(f"s_load_dwordx2 {sr(sDbg, 2)}, s[0:1], 88")
        e(f"s_load_dwordx2 {sr(sWs, 2)}, s[0:1], 96")
        e("v_lshrrev_b32 v1, 6, v0")
        e(f"s_lshr_b32 s{sIdx}, s2, 3")
        e(f"v_readfirstlane_b32 s{sWave}, v1")
        e(f"s_lshr_b32 s{sB}, s{sIdx}, 1")
        e(f"s_and_b32 s{sT0}, s{sT0}, 3"); e(f"s_lshl_b32 s{sT0}, s{sT0}, 1")
        e(f"s_and_b32 s{sM}, s{sIdx}, 1"); e(f"s_add_u32 s{sM}, s{sM}, s{sT0}")
        e(f"s_lshl_b32 s{sCl}, s{sBr}, 4"); e(f"s_add_u32 s{sCl}, s{sCl}, s{sB}")
        for r, n in ((sK, 0x4000000), (sV, 0x4000000), (sWq, 0x400000), (sWo, 0x400000), (sWs, WS_BYTES),
                     (sX, 114688), (sOut, 16 * 112 * 1024 * 2), (sDbg, 256)):
            e(f"s_mov_b32 s{r + 2}, {n}"); e(f"s_mov_b32 s{r + 3}, 0x20000")
        e(f"s_and_b32 s{sW}, s{sWave}, 3")
        e(f"s_lshl_b32 s{sW1k}, s{sW}, 10"); e(f"s_lshl_b32 s{sW4k}, s{sW}, 12")
        e(f"s_lshl_b32 s{sT1}, s{sM}, 2"); e(f"s_lshl_b32 s{sT2}, s{sB}, 5")
        kr = self.c["krot"]
        if kr == 0: e(f"s_mov_b32 s{sT3}, 0")
        elif kr == 1: e(f"s_mov_b32 s{sT3}, s{sB}")
        elif kr == 2: e(f"s_lshl_b32 s{sT3}, s{sM}, 1"); e(f"s_add_u32 s{sT3}, s{sT3}, s{sBr}")
        elif kr == 3: e(f"s_lshl_b32 s{sT3}, s{sM}, 1"); e(f"s_add_u32 s{sT3}, s{sT3}, s{sBr}"); e(f"s_add_u32 s{sT3}, s{sT3}, s{sB}")
        elif kr == 4: e(f"s_mul_i32 s{sT3}, s2, 0x9e3779b1"); e(f"s_lshr_b32 s{sT3}, s{sT3}, 28")
        e(f"s_and_b32 s{sT3}, s{sT3}, 15"); e(f"s_lshl_b32 s{sT3}, s{sT3}, 13")
        for r in range(4):
            e(f"s_add_u32 s{sT0}, s{sB}, {r}"); e(f"s_and_b32 s{sT0}, s{sT0}, 3")
            e(f"s_add_u32 s{sH + r}, s{sT0}, s{sT1}")
            e(f"s_add_u32 s{sT0}, s{sH + r}, s{sT2}"); e(f"s_lshl_b32 s{sT0}, s{sT0}, 17"); e(f"s_or_b32 s{sKVb + r}, s{sT0}, s{sT3}")
        e(f"s_add_u32 s{sOwn}, s{sM}, s{sB}"); e(f"s_and_b32 s{sOwn}, s{sOwn}, 7")
        e(f"s_mov_b32 s{sC}, {fbits(math.log2(math.e) / math.sqrt(128.0)):#x}")
        e("v_and_b32 v0, 63, v0")
        e(f"s_mul_i32 s{sT0}, s{sB}, 114688")
        e("s_waitcnt lgkmcnt(0)")
        e(f"s_add_u32 s{sX}, s{sX}, s{sT0}"); e(f"s_addc_u32 s{sX + 1}, s{sX + 1}, 0")
        e(f"s_mov_b32 s{sWg}, s2"); e(f"s_lshl_b32 s{sW2k}, s{sW}, 11")
        if self.c["rot"]:
            e(f"s_lshr_b32 s{sT0}, s{sB}, 3"); e(f"s_xor_b32 s{sT0}, s{sT0}, s{sIdx}"); e(f"s_and_b32 s{sT0}, s{sT0}, 1"); e(f"s_lshl_b32 s{sT0}, s{sT0}, 21")
            e(f"s_and_b32 s{sRot}, s{sB}, 4"); e(f"s_lshl_b32 s{sRot}, s{sRot}, 5"); e(f"s_or_b32 s{sRot}, s{sRot}, s{sT0}")
        else: e(f"s_mov_b32 s{sRot}, 0")
        e(f"s_cmp_lt_u32 s{sWave}, 4"); e("s_cbranch_scc1 L_att")
        return S.L

    def proj(self):
        c = self.c
        S = Stream(); e = S.e
        X, QA, AB = 0, 128, 224
        Wa = 244
        self.pKd, self.pVd, Wd, H, Xa = 248, 249, 250, 251, 252
        Hq = Xa
        t0, t1, t2 = 253, 254, 255
        Oreg = [160, 192, 0, 32]
        ACC = [64, 96, 128]
        W = self.W
        self.wo_lane_addr(S, 0, Wd, t0, t1, 13)
        e(f"v_mov_b32 v{t2}, v0")
        XA = 160
        e(f"v_and_b32 v{t0}, 31, v{t2}"); e(f"v_min_u32 v{t0}, 27, v{t0}")
        e(f"v_lshrrev_b32 v{t1}, 5, v{t2}"); e(f"v_and_b32 v{H}, 15, v{t0}"); e(f"v_xor_b32 v{t1}, v{t1}, v{H}")
        e(f"s_lshl_b32 s{sT0}, s{sW}, 13"); e(f"v_lshlrev_b32 v{t0}, 8, v{t0}"); e(f"v_add_u32 v{t0}, s{sT0}, v{t0}")
        for s in range(8):
            e(f"v_xor_b32 v{H}, {2 * s}, v{t1}"); e(f"v_lshl_add_u32 v{XA + s}, v{H}, 4, v{t0}")
            e(f"v_add_u32 v{XA + 8 + s}, {LDS_H}, v{XA + s}")
        e(f"v_lshrrev_b32 v{t0}, 4, v{t2}")
        e(f"v_and_b32 v{t1}, 15, v{t2}")
        e(f"v_lshlrev_b32 v{H}, 2, v{t0}")
        e(f"v_xor_b32 v{H}, v{H}, v{t1}")
        e(f"v_lshlrev_b32 v{H}, 4, v{H}")
        e(f"v_lshl_add_u32 v{self.pVd}, v{t0}, 8, v{H}")
        e(f"v_add_u32 v{self.pVd}, s{sW2k}, v{self.pVd}")
        e(f"s_lshl_b32 s{sT0}, s{sW}, 2")
        e(f"v_add_u32 v{H}, s{sT0}, v{t0}")
        e(f"v_xor_b32 v{H}, v{H}, v{t1}")
        e(f"v_lshlrev_b32 v{H}, 4, v{H}")
        e(f"v_lshl_add_u32 v{self.pKd}, v{t0}, 8, v{H}")
        e(f"v_add_u32 v{self.pKd}, s{sW1k}, v{self.pKd}")
        e(f"s_lshl_b32 s{sT0}, s{sW}, 13"); e(f"s_add_u32 s{sT0}, s{sT0}, {LDS_H}")
        e(f"v_lshlrev_b32 v{H}, 4, v{t2}"); e(f"v_add_u32 v{H}, s{sT0}, v{H}")
        e(f"v_bfe_u32 v{t1}, v{t2}, 2, 2"); e(f"v_lshlrev_b32 v{t1}, 7, v{t1}")
        e(f"v_bfe_u32 v{t0}, v{t2}, 4, 1"); e(f"v_lshl_add_u32 v{t1}, v{t0}, 5, v{t1}")
        e(f"v_and_b32 v{t0}, 1, v{t2}"); e(f"v_lshl_add_u32 v{t1}, v{t0}, 4, v{t1}")
        e(f"v_bfe_u32 v{t0}, v{t2}, 1, 1"); e(f"v_lshl_add_u32 v{t1}, v{t0}, 3, v{t1}")
        e(f"v_bfe_u32 v{t0}, v{t2}, 3, 1"); e(f"v_lshl_add_u32 v{t1}, v{t0}, 6, v{t1}")
        e(f"v_add_u32 v{t1}, {LDS_W}, v{t1}")
        e(f"v_lshrrev_b32 v{t0}, 5, v{t2}")
        e(f"v_lshl_add_u32 v{Wa}, v{t0}, 10, v{t1}"); e(f"v_xor_b32 v{Wa + 1}, 64, v{Wa}")
        e(f"v_lshl_add_u32 v{Wa + 2}, v{t0}, 9, v{t1}"); e(f"v_xor_b32 v{Wa + 3}, 64, v{Wa + 2}")

        e(f"s_and_b32 s{sT0}, s{sRot}, 0x80"); e(f"s_lshl_b32 s{sT0}, s{sT0}, 5"); e(f"v_xor_b32 v{Hq}, s{sT0}, v{H}")
        if c["pk"]: e(f"s_mov_b32 s{sC2}, s{sC}"); e(f"s_mov_b32 s{sC2 + 1}, s{sC}")
        def a_items(w):
            it = []
            so = w["slot"] - LDS_W
            kq = w["c"] % 4
            for t in range(2):
                for s in range(8):
                    cin = "0" if (kq == 0 and s == 0) else vr(QA + 16 * t, 16)
                    it.append(dict(rd=[f"ds_read_b64_tr_b16 {{d}}, v{Wa + t} offset:{so + s * 2048 + j * 512}" for j in range(2)],
                                   mf=f"{MF} {vr(QA + 16 * t, 16)}, {{a}}, {vr(X + 4 * (8 * kq + s), 4)}, {cin}", fill=[]))
            return it
        def d_items(w):
            it = []
            acc = ACC[(w["t"] - 1) % 3]
            inw = w["slot"] >= LDS_W
            so = w["slot"] - (LDS_W if inw else LDS_KV)
            for s in range(8):
                for t in range(2):
                    cin = "0" if (w["r"] == 0 and s == 0) else vr(acc + 16 * t, 16)
                    it.append(dict(rd=[f"ds_read_b64_tr_b16 {{d}}, v{Wa + t + (2 if inw else 0)} offset:{so + s * 2048 + j * 1024}" for j in range(2)],
                                   mf=f"{MF} {vr(acc + 16 * t, 16)}, {{a}}, {vr(Oreg[w['r']] + 4 * s, 4)}, {cin}", fill=[]))
            return it
        def spread(items, fl):
            for i, f in enumerate(fl): items[(i * len(items)) // len(fl)]["fill"].append(f)
        def q_write(r, t):
            out = []
            for f in (2 * t, 2 * t + 1):
                b = QA + 8 * f
                def m(S, b=b):
                    if c["pk"]:
                        for i in range(4): S.e(f"v_pk_mul_f32 {vr(b + 2 * i, 2)}, {vr(b + 2 * i, 2)}, {sr(sC2, 2)}")
                    else:
                        for i in range(8): S.e(f"v_mul_f32 v{b + i}, s{sC}, v{b + i}")
                def cw(S, b=b, f=f):
                    for i in range(4): S.e(f"v_cvt_pk_bf16_f32 v{b + i}, v{b + 2 * i}, v{b + 2 * i + 1}")
                    S.ds(f"ds_write_b128 v{Hq}, {vr(b, 4)} offset:{f * 1024}", "hw")
                    if c["dump"]:
                        S.e(f"s_lshl_b32 s{sT0}, s{sWg}, 18"); S.e(f"s_add_u32 s{sT0}, s{sT0}, {DUMP_OFF - LDS_H + r * 32768 + f * 1024}")
                        S.vmem(f"buffer_store_dwordx4 {vr(b, 4)}, v{Hq}, {sr(sWs, 4)}, s{sT0} offen", "dump")
                    if f == 3: S.e(f"v_xor_b32 v{Hq}, 0x1000, v{Hq}")
                out += [m, cw]
            return out
        def o_pick(r):
            for f in range(8): S.ds(f"ds_read_b128 {vr(Oreg[r] + 4 * f, 4)}, v{H} offset:{f * 1024}", ("o", r))
            if c["dump"]:
                S.drain_ds()
                for f in range(8):
                    e(f"s_lshl_b32 s{sT0}, s{sWg}, 18"); e(f"s_add_u32 s{sT0}, s{sT0}, {DUMP_OFF - LDS_H + 131072 + r * 32768 + f * 1024}")
                    S.vmem(f"buffer_store_dwordx4 {vr(Oreg[r] + 4 * f, 4)}, v{H}, {sr(sWs, 4)}, s{sT0} offen", "dump")

        allit = []
        st = dict(rd=0, ex=0)
        def read_ahead(epoch, ra=4):
            while st["rd"] < len(allit) and st["rd"] < st["ex"] + ra and allit[st["rd"]]["pub"] <= epoch:
                i = st["rd"]; b = AB + (i % 5) * 4
                for j, t in enumerate(allit[i]["rd"]): S.ds(t.format(d=vr(b + 2 * j, 2)), ("a", i))
                st["rd"] += 1
        def run(n, epoch):
            for _ in range(n):
                read_ahead(epoch)
                i = st["ex"]; it = allit[i]
                assert st["rd"] > i
                S.need_ds(("a", i), *it.get("needs", []))
                e(it["mf"].format(a=vr(AB + (i % 5) * 4, 4)))
                st["ex"] += 1
                read_ahead(epoch)
                for f in it["fill"]: f(S)
                if it.get("last"): it["last"](S)

        for cc in range(8):
            it = a_items(W[cc])
            for x in it: x["pub"] = self.propub[cc] - 8
            if cc < 4:
                for s in range(8): it[s]["needs"] = [("x", cc, s)]
            W[cc]["items"] = it; allit += it
        for w in self.main:
            it = a_items(w) if w["kind"] == "A" else d_items(w)
            for x in it: x["pub"] = w["first"]
            w["items"] = it; allit += it
        qlast = None
        for w in W[:32]:
            if w["c"] % 4 != 3: continue
            base = 16 * w["id"]
            for t in range(2):
                fl = q_write(w["r"], t)
                if w["id"] == 7 and t == 1: qlast = fl; continue
                for i, f in enumerate(fl): allit[base + 8 * (t + 1) + 3 + i]["fill"].append(f)
                nx = base + 8 * (t + 2)
                if nx < len(allit): allit[nx].setdefault("needs", []).append("hw")
                if w["id"] > 7:
                    ks_ = [self.step_of_item[base - 128 + 8 * (t + 1) + 3 + i] for i in (0, 3)]
                    r0 = 16 * (w["r"] - 1)
                    assert ks_[0] >= r0 + 3 and ks_[1] <= r0 + 15, (w, ks_)
        D = c["D"]
        assert D == 3
        wiss = {}
        k = -3; used = 0
        seq = self.main + [self.tail[0]]
        for j, w in enumerate(seq):
            free = (seq[j - 4]["last"] + 1) if j >= 4 else j - 3
            d = self.dma_w(w, Wd)
            for h in range(2):
                if k < free: k = free; used = 0
                if used + 2 > (4 if k < 0 else c["wcap"] + (k & 1)): k += 1; used = 0
                if w["kind"] == "D" and "wsw" not in st: st["wsw"] = k; d[0] = (lambda S, g=d[0]: (self.lane_id(S, t2), self.wo_lane_addr(S, t2, Wd, t0, t1), g(S)))
                wiss.setdefault(k, []).extend(d[2 * h:2 * h + 2]); used += 2
            w["iss"] = k
            if "first" in w and w["first"] - k < 2: print("warning: short W lead", w["id"], k, w["first"])
        nm = len(self.main)
        for n, kk in ((1, 62), (2, 63), (3, self.main[nm - 3]["last"] + 1), (4, 64), (5, self.main[nm - 2]["last"] + 1)):
            k = max(k, kk)
            if k > 64: break
            wiss.setdefault(k, []).extend(self.dma_w(self.tail[n], Wd)); self.tail_p = n + 1
        for cc in range(8):
            e("s_barrier")
            if cc < 4:
                for s in range(8):
                    S.ds(f"ds_read_b128 {vr(X + 4 * (8 * cc + s), 4)}, v{XA + s + (8 if cc == 2 else 0)} offset:{32768 * (cc == 1)}", ("x", cc, s))
                    if s == 1: read_ahead(cc - 8, 2)
            fl = []
            if 4 <= cc <= 6: fl += self.dma_k(cc - 4)
            fl += wiss.get(cc - 8, [])
            if fl: spread(W[cc]["items"][:12], fl)
            run(16, cc - 8)
        for f in qlast: f(S)
        S.drain_ds()
        S.need_vm(("kv", 0), *[("w", w["id"]) for w in self.main if w["first"] <= 0])
        self.stamp(S, 1)
        a3end = self.step_of_item[min(383 + 12, len(self.step_of_item) - 1)]
        for k in range(65):
            e("s_barrier")
            fl = []
            if k + D <= 64: fl += self.dma_k(k + D)
            fl += wiss.get(k, [])
            if k in (18, 34, 50): o_pick(k // 16 - 1)
            nk = self.nit[k]
            if nk:
                if fl: spread(allit[st["ex"]:st["ex"] + min(nk, 10)], fl)
                run(nk, k)
            else:
                for f in fl: f(S)
                read_ahead(k)
            if k in (18, 34, 50): S.need_ds(("o", k // 16 - 1))
            S.need_ds("hw")
            if k == a3end:
                e(f"v_subrev_u32 v{Wa}, {LDS_W}, v{Wa + 2}"); e(f"v_subrev_u32 v{Wa + 1}, {LDS_W}, v{Wa + 3}")
                self.lane_id(S, t2)
                self.xch_lane_addr(S, t2, Xa, t0, t1)
            if k == 52:
                e(f"s_lshl_b32 s{sT1}, s{sCl}, 3"); e(f"v_mov_b32 v{t0}, 0")
                S.vmem(f"buffer_load_dwordx2 {vr(t1, 2)}, v{t0}, {sr(sDbg, 4)}, s{sT1} offen sc1", "chk")
            if k == 56:
                S.need_vm("chk")
                e(f"s_mov_b32 s{sSpin}, 0")
                S.label("L_chk")
                e(f"v_and_b32 v{t1}, v{t1}, v{t2}")
                e(f"v_cmp_ne_u32 vcc, 0x01010101, v{t1}")
                e("s_cbranch_vccz L_chk_ok")
                e(f"s_add_u32 s{sSpin}, s{sSpin}, 1"); e(f"s_cmp_gt_u32 s{sSpin}, 0x40000"); e("s_cbranch_scc1 L_chk_ok")
                e("s_sleep 8")
                e(f"buffer_load_dwordx2 {vr(t1, 2)}, v{t0}, {sr(sDbg, 4)}, s{sT1} offen sc1")
                e("s_waitcnt vmcnt(0)")
                e("s_branch L_chk")
                S.label("L_chk_ok")
            need = [("kv", k + 1)] + [("w", w["id"]) for w in self.main if w["first"] <= k + 1]
            S.need_vm(*need)
            if k in (15, 31, 47): self.stamp(S, 2 + k // 16)
        S.drain_vm()
        e(f"s_lshl_b32 s{sXb}, s{sCl}, 20"); e(f"s_add_u32 s{sXb}, s{sXb}, s{sW4k}")
        e(f"s_lshl_b32 s{sFb}, s{sCl}, 12"); e(f"s_lshl_b32 s{sT0}, s{sW}, 7"); e(f"s_add_u32 s{sFb}, s{sFb}, s{sT0}")
        e(f"s_add_u32 s{sFb}, s{sFb}, {FLAG_OFF}")
        self.lane_id(S, t2)
        e(f"v_mov_b32 v{t0}, {OOB}"); e(f"v_cmp_eq_u32 vcc, 0, v{t2}"); e(f"v_cndmask_b32 v{t1}, v{t0}, v{t2}, vcc")
        e(f"v_mov_b32 v{t0}, 1")
        self.stamp(S, 5)
        e("s_barrier")
        if c["prio"]: e("s_setprio 2")
        o_pick(3)
        self.stamp(S, 6)
        items = []
        ends = {}
        for w in self.tail:
            it = d_items(w)
            if w["n"] in self.tbars: it[0]["pre"] = lambda S: S.e("s_barrier")
            if w["r"] == 3 and not any(x["r"] == 3 for x in self.tail[:w["n"]]):
                it[0]["premf"] = lambda S: S.need_ds(("o", 3))
            items += it
            if w["r"] == 3: ends[w["t"]] = len(items)
        post = []
        for t in range(1, 8):
            acc = ACC[(t - 1) % 3]
            pos = ends[t] + 2
            for j in range(4):
                def cv(S, j=j, acc=acc):
                    b = acc + 8 * j
                    for i in range(4): S.e(f"v_cvt_pk_bf16_f32 v{b + i}, v{b + 2 * i}, v{b + 2 * i + 1}")
                def st(S, j=j, acc=acc, t=t):
                    if j == 0:
                        S.e(f"s_add_u32 s{sT0}, s{sM}, {t}"); S.e(f"s_and_b32 s{sT0}, s{sT0}, 7"); S.e(f"s_lshl_b32 s{sT0}, s{sT0}, 17")
                        S.e(f"s_add_u32 s{sT0}, s{sT0}, {XCH_OFF + t * 16384}"); S.e(f"s_add_u32 s{sSo}, s{sT0}, s{sXb}")
                    S.vmem(f"buffer_store_dwordx4 {vr(acc + 8 * j, 4)}, v{Xa}, {sr(sWs, 4)}, s{sSo} offen offset:{j * 896} sc1", ("st", t))
                items[pos + 2 * j]["fill"].append(cv)
                items[pos + 2 * j + 1]["fill"].append(st)
            def fg(S, t=t):
                S.e(f"s_add_u32 s{sT0}, s{sM}, {t}"); S.e(f"s_and_b32 s{sT0}, s{sT0}, 7"); S.e(f"s_lshl_b32 s{sT0}, s{sT0}, 9")
                S.e(f"s_add_u32 s{sT0}, s{sT0}, s{sFb}")
                S.need_vm(("st", t))
                S.vmem(f"buffer_store_dword v{t0}, v{t1}, {sr(sWs, 4)}, s{sT0} offen offset:{t * 4} sc1", "fl")
            p = pos + 8 + c["flaglag"]
            if p < len(items): items[p]["fill"].append(fg)
            else: post.append(fg)
        self.run_items(S, items, 5, AB, 4)
        for f in post: f(S)
        acc = ACC[7 % 3]
        for j in range(8): S.ds(f"ds_write_b128 v{H}, {vr(acc + 4 * j, 4)} offset:{j * 1024}", "hw")
        S.drain_ds()
        self.stamp(S, 7)
        e("s_barrier")
        S.drain_vm()
        self.prof_dump(S, 4, 253)
        e("s_endpgm")
        return S.L

    def prof_dump(self, S, wave, v):
        if not self.c["prof"]: return
        e = S.e
        e(f"s_cmp_lg_u32 s{sWave}, {wave}"); e(f"s_cbranch_scc1 L_noprof{wave}")
        e(f"s_lshl_b32 s{sT0}, s{sWg}, 7"); e(f"s_add_u32 s{sT0}, s{sT0}, {PROF_OFF + (64 if wave else 0)}")
        e(f"v_mov_b32 v{v}, 0"); e("s_mov_b64 exec, 1")
        for i in range(16):
            e(f"v_mov_b32 v{v + 1}, s{sProf + 2 * i}")
            e(f"buffer_store_dword v{v + 1}, v{v}, {sr(sWs, 4)}, s{sT0} offen offset:{4 * i}")
        e("s_waitcnt vmcnt(0)")
        S.label(f"L_noprof{wave}")

    def att(self):
        c = self.c
        S = Stream(); e = S.e
        Q, O, Sx, P, CT, KB, VB = 8, 40, 104, 136, 144, 160, 192
        Ka, Va, H = 224, 232, 236
        L0, L1, MxA, MxB, T0, T1 = 237, 238, 239, 7, 1, 2
        Wd, Xa, Oa, Fa = 240, 241, 242, 243
        S.label("L_att")
        XD = 8
        self.wo_lane_addr(S, 0, Wd, 4, 5, 13)
        for f in self.dma_w(self.W[0], Wd): f(S)
        e("v_lshrrev_b32 v4, 4, v0"); e("v_and_b32 v5, 15, v0")
        e(f"s_mul_i32 s{sT0}, s{sW}, 28")
        for i in range(4):
            e(f"v_add_u32 v6, {4 * i}, v4"); e("v_xor_b32 v7, v6, v5"); e(f"v_add_u32 v6, s{sT0}, v6"); e("v_lshlrev_b32 v6, 10, v6")
            e(f"v_lshl_add_u32 v{XD + i}, v7, 4, v6")
            if i: e(f"v_subrev_u32 v{XD + i}, {1024 * i}, v{XD + i}")
        e(f"s_lshr_b32 s{sT2}, s{sRot}, 12"); e(f"s_lshl_b32 s{sT1}, s{sW}, 13")
        def xdma(q):
            base = (0, 32768, LDS_H, 0)[q]
            out = []
            for i in range(7):
                def g(S, i=i):
                    if i % 4 == 0:
                        e(f"s_add_u32 m0, s{sT1}, {base + 4096 * (i // 4)}")
                        e(f"s_xor_b32 s{sSo}, s{sT2}, {q * 256 + 16384 * (i // 4)}")
                    S.vmem(f"buffer_load_dwordx4 v{XD + i % 4}, {sr(sX, 4)}, s{sSo} offen offset:{(i % 4) * 1024}{c['xf']} lds", ("x", q))
                out.append(g)
            return out
        pl = [(f, 0, 0) for f in xdma(0)]
        for j in range(1, 8):
            pl += [(f, max(0, j - 2) if j >= 4 else 0, self.propub[j]) for f in self.dma_w(self.W[j], Wd)]
            if j < 4: pl += [(f, 2 if j == 3 else 0, j) for f in xdma(j)]
        ppos = [0]
        def pro_issue(cc):
            last = max([i for i, x in enumerate(pl) if x[2] <= cc])
            while ppos[0] < len(pl) and ppos[0] <= last + c["plead"] and pl[ppos[0]][1] <= cc:
                pl[ppos[0]][0](S); ppos[0] += 1
            assert ppos[0] > last
        pro_issue(0)
        e(f"s_lshl_b32 s{sFb}, s{sCl}, 3"); e(f"s_add_u32 s{sFb}, s{sFb}, s{sM}")
        e(f"s_lshl_b32 s{sXb}, s{sFb}, 17"); e(f"s_add_u32 s{sXb}, s{sXb}, s{sW4k}")
        e(f"s_mov_b32 s{sT3}, s{sFb}")
        e(f"s_lshl_b32 s{sFb}, s{sFb}, 9"); e(f"s_add_u32 s{sFb}, s{sFb}, {FLAG_OFF}")
        e(f"s_lshl_b32 s{sT0}, s{sW}, 7"); e(f"s_add_u32 s{sFb}, s{sFb}, s{sT0}")
        e(f"v_lshlrev_b32 v{Fa}, 2, v0"); e(f"v_mov_b32 v1, {OOB}"); e("v_cmp_gt_u32 vcc, 8, v0"); e("v_mov_b32 v2, 0")
        e(f"v_cndmask_b32 v1, v1, v{Fa}, vcc")
        S.vmem(f"buffer_store_dword v2, v1, {sr(sWs, 4)}, s{sFb} offen sc1", "init")
        if c["codepf"]:
            e("s_getpc_b64 s[68:69]")
            S.label("L_pc")
            e(f"s_sub_u32 s68, s68, L_pc-{KNAME}"); e("s_subb_u32 s69, s69, 0")
            e(f"s_lshl_b32 s{sT0}, s{sIdx}, 2"); e(f"s_add_u32 s{sT0}, s{sT0}, s{sW}"); e(f"s_lshl_b32 s{sT0}, s{sT0}, 9")
            e(f"v_and_b32 v4, 3, v0"); e("v_lshlrev_b32 v4, 7, v4"); e(f"v_add_u32 v4, s{sT0}, v4")
            e(f"v_min_u32 v4, L_end-{KNAME}, v4")
            S.vmem("global_load_dword v3, v4, s[68:69]", "pf")
        e("v_and_b32 v4, 31, v0"); e("v_lshlrev_b32 v4, 8, v4")
        e("v_lshrrev_b32 v5, 5, v0"); e("v_and_b32 v6, 15, v0"); e("v_xor_b32 v5, v5, v6")
        for s in range(8):
            e(f"v_xor_b32 v6, {2 * s}, v5"); e(f"v_lshl_add_u32 v{Ka + s}, v6, 4, v4")
        e("v_bfe_u32 v4, v0, 2, 2"); e("v_lshrrev_b32 v5, 5, v0"); e("v_lshl_add_u32 v5, v5, 2, v4"); e("v_lshlrev_b32 v5, 8, v5")
        e("v_bfe_u32 v6, v0, 4, 1"); e("v_lshl_add_u32 v5, v6, 5, v5")
        e("v_and_b32 v6, 3, v0"); e("v_lshl_add_u32 v5, v6, 3, v5")
        for t in range(4):
            e(f"v_xor_b32 v6, {t}, v4"); e(f"v_lshl_add_u32 v{Va + t}, v6, 6, v5")
        e(f"s_lshl_b32 s{sT0}, s{sW}, 13"); e(f"s_add_u32 s{sT0}, s{sT0}, {LDS_H}")
        e(f"v_lshlrev_b32 v{H}, 4, v0"); e(f"v_add_u32 v{H}, s{sT0}, v{H}")
        self.xch_lane_addr(S, 0, Xa, 4, 5)
        e(f"s_mul_i32 s{sT0}, s{sB}, 112"); e(f"s_mul_i32 s{sLoop}, s{sW}, 28"); e(f"s_add_u32 s{sT0}, s{sT0}, s{sLoop}")
        e("v_and_b32 v4, 31, v0"); e(f"v_add_u32 v5, s{sT0}, v4"); e("v_lshlrev_b32 v5, 11, v5")
        e("v_lshrrev_b32 v6, 5, v0"); e("v_lshl_add_u32 v5, v6, 4, v5")
        e(f"s_lshl_b32 s{sT0}, s{sBr}, 10"); e(f"s_lshl_b32 s{sLoop}, s{sOwn}, 7"); e(f"s_add_u32 s{sT0}, s{sT0}, s{sLoop}")
        e(f"v_add_u32 v5, s{sT0}, v5"); e("v_cmp_gt_u32 vcc, 28, v4"); e(f"v_mov_b32 v6, {OOB}")
        e(f"v_cndmask_b32 v{Oa}, v6, v5, vcc")
        if c["prio"]: e("s_setprio 2")
        nf2 = [0]
        def fbar():
            e("s_barrier")
            if c["fine"]:
                e("s_memtime s[68:69]"); e("s_memrealtime s[100:101]"); S.drain_ds(force=True); e(f"v_writelane_b32 v246, s68, {nf2[0]}"); e(f"v_writelane_b32 v247, s100, {nf2[0]}"); nf2[0] += 1
        for cc in range(8):
            pro_issue(cc)
            S.need_vm(("x", cc), *[("w", j) for j in range(8) if self.propub[j] <= cc])
            fbar()
        assert not S.vm
        self.wo_lane_addr(S, 0, Wd, 4, 5)
        rare = []
        if c["fine"]: e("s_nop 1"); e("s_mov_b32 m0, 0")
        def abar():
            if not c["fine"]:
                e("s_barrier"); return
            e("s_memtime s[68:69]"); S.drain_ds(force=True); e("v_writelane_b32 v244, s68, m0")
            e("s_barrier")
            e("s_memtime s[68:69]"); S.drain_ds(force=True); e("v_writelane_b32 v245, s68, m0"); e("s_add_u32 m0, m0, 1")

        def kr(u, i): S.ds(f"ds_read_b128 {vr(KB + 4 * i, 4)}, v{Ka + i} offset:{LDS_KV + u * 16384}", ("k", i))
        def vrd(u, i):
            s, t = i // 4, i % 4
            for j in range(2): S.ds(f"ds_read_b64_tr_b16 {vr(VB + 4 * i + 2 * j, 2)}, v{Va + t} offset:{LDS_KV + u * 16384 + 8192 + s * 4096 + j * 2048}", ("v", i))
        def qread():
            for f in range(8): S.ds(f"ds_read_b128 {vr(Q + 4 * f, 4)}, v{H} offset:{f * 1024}", "q")
        def pv(i, zero=False):
            s, t = i // 4, i % 4
            e(f"{MF} {vr(O + 16 * t, 16)}, {vr(VB + 4 * i, 4)}, {vr(P + 4 * s, 4)}, {'0' if zero and s == 0 else vr(O + 16 * t, 16)}")
        def adds(b, init=False):
            return [(f"v_mov_b32 v{(L0, L1)[i]}, v{b + i}" if init and i < 2 else f"v_add_f32 v{(L0, L1)[i % 2]}, v{(L0, L1)[i % 2]}, v{b + i}") for i in range(16)]
        def maxes(b):
            mx = [f"v_max3_f32 v{MxA}, v{b}, v{b + 1}, v{b + 2}", f"v_max3_f32 v{MxB}, v{b + 3}, v{b + 4}, v{b + 5}"]
            for i in range(5): mx.append(f"v_max3_f32 v{(MxA, MxB)[i % 2]}, v{(MxA, MxB)[i % 2]}, v{b + 6 + 2 * i}, v{b + 7 + 2 * i}")
            mx.append(f"v_max_f32 v{MxA}, v{MxA}, v{MxB}")
            return mx
        def exps(b):
            o = []
            for i in range(8):
                o += [f"v_exp_f32 v{b + 2 * i}, v{b + 2 * i}", f"v_exp_f32 v{b + 2 * i + 1}, v{b + 2 * i + 1}"]
                if i > 0: o.append(f"v_cvt_pk_bf16_f32 v{P + i - 1}, v{b + 2 * i - 2}, v{b + 2 * i - 1}")
            o.append(f"v_cvt_pk_bf16_f32 v{P + 7}, v{b + 14}, v{b + 15}")
            return o
        def xmax(): return [f"v_mov_b32 v{T0}, v{MxA}", "s_nop 1", f"v_permlane32_swap_b32 v{MxA}, v{T0}", f"v_max_f32 v{MxA}, v{MxA}, v{T0}"]
        def fin_head():
            return [f"v_add_f32 v{L0}, v{L0}, v{L1}", f"v_mov_b32 v{T1}, v{L0}", "s_nop 1", f"v_permlane32_swap_b32 v{L0}, v{T1}",
                    f"v_add_f32 v{L0}, v{L0}, v{T1}", f"v_rcp_f32 v{T1}, v{L0}"]
        def fin_frag(f):
            b = O + 8 * f
            if c["pk"]:
                for i in range(4): e(f"v_pk_mul_f32 {vr(b + 2 * i, 2)}, {vr(b + 2 * i, 2)}, {vr(T1, 2)} op_sel_hi:[1,0]")
            else:
                for i in range(8): e(f"v_mul_f32 v{b + i}, v{b + i}, v{T1}")
            for i in range(4): e(f"v_cvt_pk_bf16_f32 v{b + i}, v{b + 2 * i}, v{b + 2 * i + 1}")
            S.ds(f"ds_write_b128 v{H}, {vr(b, 4)} offset:{f * 1024}", "hw")
        nvb = c["nvb"]
        nrare = [0]
        def beta(u, mode=""):
            sn, so = Sx + 16 * ((u - 1) & 1), Sx + 16 * (u & 1)
            abar()
            ops = adds(so, mode == "zero"); mx = maxes(sn)
            fill = [ops[0:3], ops[3:6], ops[6:9], ops[9:11] + mx[0:1], ops[11:13] + mx[1:3], ops[13:15] + mx[3:5], ops[15:16] + mx[5:8], []]
            if mode == "nopv": fill = [[], [], [], [], [], [], [], mx]
            for i in range(8):
                if mode != "nopv": pv(i, mode == "zero")
                if mode == "q":
                    S.ds(f"ds_read_b128 {vr(Q + 4 * i, 4)}, v{H} offset:{i * 1024}", ("k", i)); kr(u, i)
                else:
                    if i == 7: S.need_ds(("k", 7))
                    if i < 4: kr(u, 2 * i); kr(u, 2 * i + 1)
                    elif i - 4 < nvb: vrd(u, i - 4)
                for x in fill[i]: e(x)
                if i == 6 and mode in ("", "q", "zero"): e(f"v_cmp_lt_f32 vcc, 0x41000000, v{MxA}")
            if mode in ("switch", "nopv"):
                for x in xmax(): e(x)
                for i in range(16): e(f"v_sub_f32 v{CT + i}, 0, v{MxA}")
                return
            n = nrare[0]; nrare[0] += 1
            e(f"s_cbranch_vccnz L_rare{n}")
            S.label(f"L_back{n}")
            R = [f"L_rare{n}:"] + xmax() + [f"v_max_f32 v{MxA}, 0, v{MxA}"]
            R += [f"v_sub_f32 v{sn + i}, v{sn + i}, v{MxA}" for i in range(16)]
            R += ["s_call_b64 s[68:69], L_rescale", f"s_branch L_back{n}"]
            rare.extend(R)
        def alpha(u, mode="", nv0=None):
            sn, so = Sx + 16 * ((u - 1) & 1), Sx + 16 * (u & 1)
            ex = [] if mode == "first" else exps(sn)
            nv = nvb if nv0 is None else nv0
            if mode in ("switch", "sub"):
                sub = [f"v_sub_f32 v{sn + i}, v{sn + i}, v{MxA}" for i in range(16)]
                x2 = []
                for i in range(8): x2 += sub[2 * i + 2:2 * i + 4] + ex[3 * i:3 * i + 3]
                e(sub[0]); e(sub[1])
                grp = [x2[5 * i:5 * i + 5] for i in range(8)]
            else: grp = [ex[3 * i:3 * i + 3] for i in range(8)]
            if mode == "switch":
                for x in fin_head(): e(x)
            for i in range(8):
                S.need_ds(("k", i))
                cin = vr(so, 16) if i else ("0" if mode in ("first", "c0") else vr(CT, 16))
                e(f"{MF} {vr(so, 16)}, {vr(KB + 4 * i, 4)}, {vr(Q + 4 * i, 4)}, {cin}")
                for _ in range(2 if nv0 == 0 else 1):
                    if nv < 8 and mode != "first": vrd(u, nv); nv += 1
                for x in grp[i]: e(x)
                if mode == "switch": fin_frag(i)
            S.drain_ds()

        abar()
        for i in range(8):
            S.ds(f"ds_read_b128 {vr(Q + 4 * i, 4)}, v{H} offset:{i * 1024}", ("k", i)); kr(0, i)
        alpha(0, "first")
        beta(1, "nopv"); alpha(1, "sub")
        e(f"s_cmp_lg_u32 s{sWave}, 0"); e("s_cbranch_scc1 L_noann")
        e(f"v_mov_b32 v4, {OOB}"); e("v_cmp_eq_u32 vcc, 0, v0"); e(f"v_mov_b32 v5, 1"); e(f"v_cndmask_b32 v4, v4, v0, vcc")
        e(f"buffer_store_byte v5, v4, {sr(sDbg, 4)}, s{sT3} offen sc1")
        S.label("L_noann")
        e(f"s_mov_b32 s{sHead}, 0")
        e("s_branch L_s2")
        S.label("L_s0")
        beta(0, "q"); alpha(0, "c0", 0)
        beta(1, "switch"); alpha(1, "switch")
        S.label("L_s2")
        beta(2, "zero"); alpha(2)
        beta(3); alpha(3)
        if c["wopf"]:
            e(f"s_lshr_b32 s{sT0}, s{sW}, 1"); e(f"s_add_u32 s{sT0}, s{sT0}, {c['wopf'] - 1}"); e(f"s_cmp_lg_u32 s{sT0}, s{sHead}"); e("s_cbranch_scc1 L_nowpf")
            e(f"s_lshr_b32 s{sT0}, s{sM}, 1"); e(f"s_lshl_b32 s{sT0}, s{sT0}, 20")
            e(f"s_lshl_b32 s{sT1}, s{sIdx}, 15"); e(f"s_add_u32 s{sT0}, s{sT0}, s{sT1}")
            e(f"s_lshl_b32 s{sT1}, s{sW}, 13"); e(f"s_add_u32 s{sT0}, s{sT0}, s{sT1}")
            e(f"v_lshlrev_b32 v4, 7, v0")
            e(f"buffer_load_dword v5, v4, {sr(sWo, 4)}, s{sT0} offen{c['wf']}")
            S.label("L_nowpf")
        e(f"s_mov_b32 s{sLoop}, 0")
        S.label("L_loop")
        for u in range(4):
            beta(u); alpha(u)
        e(f"s_add_u32 s{sLoop}, s{sLoop}, 1"); e(f"s_cmp_lt_u32 s{sLoop}, 3"); e("s_cbranch_scc1 L_loop")
        e(f"s_add_u32 s{sHead}, s{sHead}, 1"); e(f"s_cmp_lt_u32 s{sHead}, 4"); e("s_cbranch_scc1 L_s0")
        abar()
        ops = adds(Sx); mx = maxes(Sx + 16)
        fill = [ops[0:4], ops[4:8], mx[0:4], mx[4:8] + [f"v_cmp_lt_f32 vcc, 0x41000000, v{MxA}"], ops[8:12], ops[12:16], [], []]
        for i in range(8):
            pv(i); vrd(0, i)
            for x in fill[i]: e(x)
        n = nrare[0]
        e(f"s_cbranch_vccnz L_rare{n}")
        S.label(f"L_back{n}")
        rare.extend([f"L_rare{n}:"] + xmax() + [f"v_max_f32 v{MxA}, 0, v{MxA}"] + [f"v_sub_f32 v{Sx + 16 + i}, v{Sx + 16 + i}, v{MxA}" for i in range(16)]
                    + ["s_call_b64 s[68:69], L_rescale", f"s_branch L_back{n}"])
        rare.extend(["L_rescale:", f"v_sub_f32 v{T0}, 0, v{MxA}", f"v_exp_f32 v{T0}, v{T0}"] + [f"v_sub_f32 v{CT + i}, v{CT + i}, v{MxA}" for i in range(16)]
                    + [f"v_mul_f32 v{L0}, v{L0}, v{T0}", f"v_mul_f32 v{L1}, v{L1}, v{T0}"] + [f"v_mul_f32 v{O + i}, v{O + i}, v{T0}" for i in range(64)]
                    + ["s_nop 1", "s_setpc_b64 s[68:69]"])
        ex = exps(Sx + 16); ad = adds(Sx + 16)
        for x in ex[:14]: e(x)
        ex = ex[14:] + ad
        for i in range(8):
            S.need_ds(("v", i))
            pv(i)
            for x in ex[4 * i:4 * i + 4]: e(x)
        for x in fin_head(): e(x)
        for f in range(8): fin_frag(f)
        S.drain_ds(force=True)
        S.drain_vm(force=True)
        self.stamp(S, 5)
        fbar()
        if c["prio"]: e("s_setprio 0")
        NT = len(self.tail)
        nxt = self.tail_p
        def issue_upto(n):
            nonlocal nxt
            while nxt <= min(n, NT - 1):
                for f in self.dma_w(self.tail[nxt], Wd): f(S)
                nxt += 1
        IN, SUM, OWN, PL = 8, 120, 152, 4
        first = True
        def accum(t):
            nonlocal first
            for j in range(4):
                S.need_vm(("in", t, j))
                for i in range(4):
                    src = IN + 16 * (t - 1) + 4 * j + i; d = SUM + 8 * j + 2 * i
                    if first:
                        e(f"v_lshlrev_b32 v{d}, 16, v{src}"); e(f"v_and_b32 v{d + 1}, 0xffff0000, v{src}")
                    else:
                        e(f"v_lshlrev_b32 v{T0}, 16, v{src}"); e(f"v_and_b32 v{T1}, 0xffff0000, v{src}")
                        e(f"v_add_f32 v{d}, v{d}, v{T0}"); e(f"v_add_f32 v{d + 1}, v{d + 1}, v{T1}")
            first = False
        npoll = [0]
        def poll_issue():
            e("s_mov_b64 exec, 0xff")
            S.vmem(f"buffer_load_dword v{PL}, v{Fa}, {sr(sWs, 4)}, s{sFb} offen sc1", "poll")
            e("s_mov_b64 exec, -1")
        def poll_check(t0, t1):
            si = npoll[0]; npoll[0] += 1
            mask = ((1 << (t1 + 1)) - 1) & ~((1 << (t0 + 1)) - 1)
            S.need_vm("poll")
            e(f"s_mov_b32 s{sSpin}, 0")
            e(f"s_mov_b64 exec, {mask}")
            S.label(f"L_poll{si}")
            e(f"v_cmp_ne_u32 vcc, 1, v{PL}")
            e(f"s_cbranch_vccz L_polled{si}")
            e(f"s_add_u32 s{sSpin}, s{sSpin}, 1"); e(f"s_cmp_gt_u32 s{sSpin}, 0x40000"); e(f"s_cbranch_scc1 L_polled{si}")
            e("s_sleep 1")
            e(f"buffer_load_dword v{PL}, v{Fa}, {sr(sWs, 4)}, s{sFb} offen sc1")
            e("s_waitcnt vmcnt(0)")
            e(f"s_branch L_poll{si}")
            S.label(f"L_polled{si}")
            e("s_mov_b64 exec, -1")
            for t in range(t0 + 1, t1 + 1):
                e(f"s_add_u32 s{sSo}, s{sXb}, {XCH_OFF + t * 16384}")
                for j in range(4):
                    S.vmem(f"buffer_load_dwordx4 {vr(IN + 16 * (t - 1) + 4 * j, 4)}, v{Xa}, {sr(sWs, 4)}, s{sSo} offen offset:{j * 896} sc1", ("in", t, j))
        issue_upto(7)
        rcv = dict(c["rcv"])
        tl = 0; ta = 0; pend = None
        for bi, n in enumerate(self.tbars):
            hi = self.tbars[bi + 1] if bi + 1 < len(self.tbars) else NT
            assert nxt >= hi, (n, hi, nxt)
            S.need_vm(*[("w", self.tail[i]["id"]) for i in range(hi)])
            fbar()
            ta_hi = tl
            if n in rcv: poll_issue()
            issue_upto(n + 6)
            while ta < ta_hi: ta += 1; accum(ta)
            if n in rcv: poll_check(tl, rcv[n]); tl = rcv[n]
        self.stamp(S, 6)
        for t1 in c["stage"]:
            if t1 <= tl: continue
            poll_issue()
            while ta < tl: ta += 1; accum(ta)
            poll_check(tl, t1); tl = t1
        while ta < tl: ta += 1; accum(ta)
        self.stamp(S, 7)
        fbar()
        for j in range(8): S.ds(f"ds_read_b128 {vr(OWN + 4 * j, 4)}, v{H} offset:{j * 1024}", ("own", j // 2))
        for j in range(4):
            S.need_ds(("own", j))
            for i in range(8): e(f"v_add_f32 v{SUM + 8 * j + i}, v{SUM + 8 * j + i}, v{OWN + 8 * j + i}")
            for i in range(4): e(f"v_cvt_pk_bf16_f32 v{SUM + 8 * j + i}, v{SUM + 8 * j + 2 * i}, v{SUM + 8 * j + 2 * i + 1}")
            S.vmem(f"buffer_store_dwordx4 {vr(SUM + 8 * j, 4)}, v{Oa}, {sr(sOut, 4)}, 0 offen offset:{j * 32}", "out")
        if c["prof"]:
            S.drain_vm(); self.stamp(S, 8)
            e(f"s_memtime {sr(sProf + 20, 2)}"); S.drain_ds(force=True)
            if c["fine"]:
                e(f"s_lshl_b32 s{sT0}, s{sWg}, 12"); e(f"s_lshl_b32 s{sT1}, s{sW}, 10"); e(f"s_add_u32 s{sT0}, s{sT0}, s{sT1}"); e(f"s_add_u32 s{sT0}, s{sT0}, {PROF_OFF + 0x10000}")
                e(f"buffer_store_dword v244, v{Fa}, {sr(sWs, 4)}, s{sT0} offen"); e(f"buffer_store_dword v245, v{Fa}, {sr(sWs, 4)}, s{sT0} offen offset:256")
                e(f"buffer_store_dword v246, v{Fa}, {sr(sWs, 4)}, s{sT0} offen offset:512"); e(f"buffer_store_dword v247, v{Fa}, {sr(sWs, 4)}, s{sT0} offen offset:768")
            self.prof_dump(S, 0, 4)
        e("s_endpgm")
        return S.L + rare

    def build(self):
        self.make_schedule()
        rep = []
        body = pad_hazards(self.entry() + self.proj(), rep) + pad_hazards(self.att(), rep)
        self.nops = rep
        hdr = open("header.txt").read().rstrip("\n").split("\n")
        L = hdr + ["; @launch grid=(256,1,1) block=(512,1,1) lds=163840",
                   '.amdgcn_target "amdgcn-amd-amdhsa--gfx950"', ".text", f".globl {KNAME}", ".p2align 8",
                   f".type {KNAME},@function", f"{KNAME}:"]
        L += [("    " + x if not x.endswith(":") else x) for x in body]
        L += ["L_end:", "    s_endpgm", '.section .rodata,"a"', ".p2align 6", f".amdhsa_kernel {KNAME}",
              "  .amdhsa_next_free_vgpr 256", "  .amdhsa_next_free_sgpr 102", "  .amdhsa_accum_offset 256",
              "  .amdhsa_group_segment_fixed_size 0", "  .amdhsa_kernarg_size 104", "  .amdhsa_user_sgpr_count 2",
              "  .amdhsa_user_sgpr_kernarg_segment_ptr 1", "  .amdhsa_system_sgpr_workgroup_id_x 1",
              "  .amdhsa_float_denorm_mode_32 3", ".end_amdhsa_kernel"]
        return "\n".join(L) + "\n"

if __name__ == "__main__":
    import ast
    out = sys.argv[1]
    kw = {}
    for a in sys.argv[2:]:
        k, v = a.split("=", 1); kw[k] = ast.literal_eval(v)
    g = Gen(**kw)
    open(out, "w").write(g.build())
    print("nops inserted:", len(g.nops), "tail barriers", g.tbars)
    for n in g.nops: print("  ", n)
```

```python
import re

def vr(b, n=1):
    return f"v{b}" if n == 1 else f"v[{b}:{b+n-1}]"
def rr(b, n=1):
    if b >= 256:
        b -= 256
        return f"a{b}" if n == 1 else f"a[{b}:{b+n-1}]"
    assert b + n <= 256
    return vr(b, n)
def sr(b, n=1):
    return f"s{b}" if n == 1 else f"s[{b}:{b+n-1}]"

class Stream:
    def __init__(self):
        self.L = []
        self.lg = []
        self.vm = []
    def e(self, s):
        self.L.append(s)
    def label(self, s):
        self.L.append(s + ":")
    def ds(self, text, tag=None):
        if len(self.lg) >= 15:
            self.e("s_waitcnt lgkmcnt(14)")
            self.lg = self.lg[-14:]
        self.e(text); self.lg.append(tag)
    def vmem(self, text, tag=None):
        if len(self.vm) >= 63:
            self.e("s_waitcnt vmcnt(62)")
            self.vm = self.vm[-62:]
        self.e(text); self.vm.append(tag)
    def need_ds(self, *tags):
        idx = -1
        for i, t in enumerate(self.lg):
            if t in tags: idx = i
        if idx >= 0:
            rem = len(self.lg) - 1 - idx
            self.e(f"s_waitcnt lgkmcnt({rem})")
            self.lg = self.lg[idx+1:]
    def need_vm(self, *tags):
        idx = -1
        for i, t in enumerate(self.vm):
            if t in tags: idx = i
        if idx >= 0:
            rem = len(self.vm) - 1 - idx
            self.e(f"s_waitcnt vmcnt({rem})")
            self.vm = self.vm[idx+1:]
    def drain_ds(self, force=False):
        if self.lg or force:
            self.e("s_waitcnt lgkmcnt(0)"); self.lg = []
    def drain_vm(self, force=False):
        if self.vm or force:
            self.e("s_waitcnt vmcnt(0)"); self.vm = []

_reg = re.compile(r"^-?(?:abs\()?([vsa])(?:(\d+)|\[(\d+):(\d+)\])\)?$")
def regs(op):
    op = op.strip()
    if op == "vcc": return {("s", "vcc")}
    if op == "exec": return {("s", "exec")}
    if op == "m0": return {("s", "m0")}
    m = _reg.match(op)
    if not m: return set()
    k = m.group(1)
    if m.group(2) is not None: return {(k, int(m.group(2)))}
    return {(k, i) for i in range(int(m.group(3)), int(m.group(4)) + 1)}

TRANS = ("v_exp_f32", "v_log_f32", "v_rcp_f32", "v_rsq_f32", "v_sqrt_f32")
def parse(line):
    s = line.split(";")[0].strip()
    if not s or s.endswith(":") or s.startswith("."): return None
    p = s.split(None, 1)
    mn = p[0]
    rest = p[1] if len(p) > 1 else ""
    rest = re.sub(r"\s+(op_sel|op_sel_hi|neg_lo|neg_hi):\[[^\]]*\]", "", rest)
    ops = [o.strip() for o in rest.split(",")]
    if ops:
        last = ops[-1].split()
        mods = last[1:] if last else []
        ops[-1] = last[0] if last else ""
    else:
        mods = []
    d = dict(mn=mn, ops=ops, mods=mods, rd=set(), wr=set(), kind="other", states=1)
    if mn == "s_nop":
        d["states"] = int(ops[0]) + 1; d["kind"] = "nop"
    elif mn.startswith("v_mfma"):
        d["kind"] = "mfma"; d["wr"] = regs(ops[0]); d["a"] = regs(ops[1]) | regs(ops[2]); d["c"] = regs(ops[3]); d["rd"] = d["a"] | d["c"]
    elif mn.startswith(("v_permlane32_swap", "v_permlane16_swap")):
        d["kind"] = "valu"; d["perm"] = True; d["wr"] = regs(ops[0]) | regs(ops[1]); d["rd"] = set(d["wr"])
    elif mn.startswith("v_cmp"):
        d["kind"] = "valu"; d["wr"] = regs(ops[0]); d["rd"] = set().union(*[regs(o) for o in ops[1:]])
    elif mn.startswith("v_readfirstlane") or mn.startswith("v_readlane"):
        d["kind"] = "valu"; d["rl"] = True; d["wr"] = regs(ops[0]); d["rd"] = regs(ops[1])
    elif mn.startswith("v_"):
        d["kind"] = "valu"; d["wr"] = regs(ops[0]); d["rd"] = set().union(*[regs(o) for o in ops[1:]]) if len(ops) > 1 else set()
        if mn.startswith(("v_fmac", "v_dot2c", "v_writelane")): d["rd"] |= d["wr"]
        if mn.startswith("v_dot"): d["dot"] = True
        if mn.startswith(TRANS): d["trans"] = True
    elif mn.startswith("ds_read"):
        d["kind"] = "ds"; d["wr"] = regs(ops[0]); d["rd"] = regs(ops[1])
    elif mn.startswith("ds_write"):
        d["kind"] = "ds"; d["rd"] = set().union(*[regs(o) for o in ops])
    elif mn.startswith("buffer_load") or mn.startswith("global_load"):
        d["kind"] = "vmem"
        if "lds" in mods:
            d["rd"] = set().union(*[regs(o) for o in ops]) | {("s", "m0")}; d["dma"] = True
        else:
            d["wr"] = regs(ops[0]); d["rd"] = set().union(*[regs(o) for o in ops[1:]])
    elif mn.startswith("buffer_store") or mn.startswith("buffer_atomic") or mn.startswith("global_store"):
        d["kind"] = "vmem"; d["rd"] = set().union(*[regs(o) for o in ops])
        if "x4" in mn or "x3" in mn: d["wide"] = regs(ops[0])
    elif mn.startswith("s_"):
        d["kind"] = "salu"
        if mn.startswith(("s_cmp", "s_bitcmp", "s_cbranch", "s_branch", "s_waitcnt", "s_barrier", "s_setprio", "s_sleep", "s_endpgm")):
            d["rd"] = set().union(*[regs(o) for o in ops]) if ops else set()
        else:
            d["wr"] = regs(ops[0]); d["rd"] = set().union(*[regs(o) for o in ops[1:]]) if len(ops) > 1 else set()
            if mn.startswith("s_addk"): d["rd"] |= d["wr"]
    return d

def required(p, c):
    n = 0
    vw = {r for r in p["wr"] if r[0] in "va"}
    sw = {r for r in p["wr"] if r[0] == "s"}
    if p["kind"] == "mfma":
        big = "32x32" in p["mn"]
        raw, ovl, war = (12, 10, 7) if big else (8, 6, 3)
        if c["kind"] == "mfma":
            if vw & c["a"]: n = max(n, raw)
            if vw & c["c"] and c["c"] != vw: n = max(n, ovl)
        elif c["kind"] in ("valu", "ds", "vmem"):
            if vw & (c["rd"] | c["wr"]): n = max(n, raw)
        if c["kind"] == "valu" and (p["c"] & c["wr"]): n = max(n, war)
    if p.get("dot") and vw & (c["rd"] | c["wr"]) and not (c["mn"] == p["mn"] and not (vw & (regs(c["ops"][1]) | regs(c["ops"][2])))): n = max(n, 3)
    if p["kind"] == "valu":
        if c["kind"] == "mfma" and vw & c["rd"]: n = max(n, 2)
        if c.get("perm") and vw & c["rd"]: n = max(n, 2)
        if c.get("rl") and vw & c["rd"]: n = max(n, 1)
        if p.get("trans") and c["kind"] == "valu" and vw & c["rd"]: n = max(n, 1)
        if c["kind"] == "vmem" and sw & c["rd"]: n = max(n, 5)
        if c["kind"] == "valu" and sw & c["rd"]: n = max(n, 2)
        if c["kind"] == "salu" and sw & c["rd"]: n = max(n, 1)
    if p["kind"] == "salu" and ("s", "m0") in sw and c.get("dma"): n = max(n, 1)
    if p.get("wide") and (p["wide"] & c["wr"]): n = max(n, 2)
    return n

def pad_hazards(lines, report=None):
    out = []
    hist = []
    for ln in lines:
        d = parse(ln)
        if d is None:
            out.append(ln); continue
        need = 0
        dist = 0
        for p in reversed(hist):
            r = required(p, d)
            if r > dist: need = max(need, r - dist)
            dist += p["states"]
            if dist >= 20: break
        if need > 0:
            if report is not None: report.append((need, ln))
            k = need
            while k > 0:
                t = min(k, 16)
                out.append(f"s_nop {t-1}"); hist.append(parse(f"s_nop {t-1}")); k -= t
        out.append(ln); hist.append(d)
        if d["mn"] in ("s_branch", "s_endpgm", "s_setpc_b64"): hist = []
        if len(hist) > 40: hist = hist[-40:]
    return out
```

```python
import sys, math, struct
sys.path.insert(0, "work")
from asmlib import *

KNAME = "concat_heads__mha_block_cached__mha_block_cached__near_ridge_kernel"
MF = "v_mfma_f32_16x16x32_bf16"
WS_BYTES = 288882688
XCH_OFF = 0
FLAG_OFF = 0x2000000
PROF_OFF = 0x2100000
DUMP_OFF = 0x3000000
LDS_R, RSZ = 49152, 28672
OOB = 0x7fff0000

sK, sV, sWq, sWo, sWs, sX, sOut, sDbg = 8, 12, 16, 20, 24, 28, 32, 36
sBr, sB, sM, sCl, sIdx = 3, 4, 5, 6, 7
sW, sRw, sRot, sKVb, sOwn = 42, 43, 44, 45, 46
sW1k, sW4k = 47, 48
sC2 = 50
sT0, sT1, sT2, sT3 = 52, 53, 54, 55
sSo, sSx, sLoop, sSpin = 56, 57, 58, 59
sXo, sXi, sFo, sFi = 60, 61, 62, 63
sWs_, sWd, sXs, sXd0, sXd1, sPf = 64, 65, 66, 67, 40, 41
sLink = 68
sProf = 70

A0 = 256
LANE, T0, T1, T2, L16, WOA, OUTA, OWA = 0, 1, 2, 3, 4, 5, 6, 7
def OT(t, u): return 8 + (u * 5 + t) * 4 if t < 5 else A0 + (u * 3 + t - 5) * 4
def SS(u): return 148 + 8 * u
def CT(u): return 204 + 4 * u
def LL(u): return 232 + u
MXA, MXB = 239, 240
KA, VA, KVD, WOD = 241, 245, 253, 255
def QF(ks, u): return A0 + 84 + (u * 4 + ks) * 4
def FB(i): return A0 + 196 + 4 * i
def KF(kf): return FB(0) if kf == 7 else FB(1 + kf)
def VF(t): return FB(0) if t == 0 else FB(7 + t)

DEF = dict(prof=False, dump=False, fine=False, kvf=" nt", N=4, rot=True, krot=True, codepf=True, wopf=True,
           G=2, flagpos=80, flagpos7=64, pollpos=40, chkpos=100, k0start=0)

def fbits(x):
    return struct.unpack("<I", struct.pack("<f", x))[0]

class Slots:
    def __init__(self, n): self.f = [[] for _ in range(n)]; self.pre = [[] for _ in range(n)]
    def add(self, i, x):
        if isinstance(x, list): self.f[i].extend(x)
        else: self.f[i].append(x)
    def spread(self, lo, hi, xs):
        for k, x in enumerate(xs): self.add(lo + (k * (hi - lo)) // len(xs), x)

class Gen:
    def __init__(self, **kw):
        self.c = dict(DEF); self.c.update(kw)
        self.S = Stream(); self.ool = []; self.nst = 0

    def stamp(self, i):
        if self.c["prof"]:
            self.S.e(f"s_memrealtime {sr(sProf + 2 * i, 2)}"); self.S.drain_ds(force=True)
    def do(self, x):
        if isinstance(x, str): self.S.e(x)
        elif isinstance(x, list):
            for y in x: self.do(y)
        else: x()
    def run(self, mf, sl, cap=99, lag=3):
        q = []
        for i, m in enumerate(mf):
            for x in sl.pre[i]: self.do(x)
            self.S.e(m)
            q += [(i, x) for x in sl.f[i]]
            n0 = len(self.S.L)
            room = cap - (1 if i + 1 < len(mf) and sl.pre[i + 1] else 0)
            while q and (len(self.S.L) - n0 < room or q[0][0] <= i - lag): self.do(q.pop(0)[1])
        for _, x in q: self.do(x)

    def kv_dma(self, isv, tile_expr, tag, pace=True):
        S = self.S; c = self.c
        slot = 16384 if isv else 8192
        out = []
        for n in range(8):
            o = []
            if n == 0:
                o.append(f"s_add_u32 m0, s{sRw}, {slot}")
                if tile_expr is None: o += [f"s_lshl_b32 s{sSo}, s{sLoop}, 13", f"s_xor_b32 s{sSo}, s{sSo}, s{sKVb}"]
                else: o.append(f"s_xor_b32 s{sSo}, s{sKVb}, {tile_expr << 13}")
            if n == 4: o += [f"s_add_u32 m0, s{sRw}, {slot + 4096}", f"s_addk_i32 s{sSo}, 0x1000"]
            def g(n=n):
                if pace and len(S.vm) > c["N"]:
                    S.e(f"s_waitcnt vmcnt({c['N']})"); S.vm = S.vm[len(S.vm) - c["N"]:]
                S.vmem(f"buffer_load_dwordx4 v{KVD + (n & 1)}, {sr(sV if isv else sK, 4)}, s{sSo} offen offset:{(n & 3) * 1024}{c['kvf']} lds", tag)
            out.append(o + [g])
        return out

    def wo_dma(self, n):
        S = self.S
        t, hh, slot = n // 4 + 1, n % 4, (n % 8) * 16384
        out = []
        for i in range(4):
            o = []
            if i == 0:
                o.append(f"s_add_u32 m0, s{sW4k}, {slot}")
                if hh == 0: o += [f"s_add_u32 s{sSx}, s{sOwn}, {t}", f"s_and_b32 s{sSx}, s{sSx}, 7", f"s_lshl_b32 s{sSx}, s{sSx}, 7"]
                else: o.append(f"s_add_u32 s{sSx}, s{sSx}, {131072 - 3 * 7168}")
            else: o.append(f"s_addk_i32 s{sSx}, 7168")
            o.append(lambda i=i: S.vmem(f"buffer_load_dwordx4 v{WOD}, {sr(sWo, 4)}, s{sSx} offen offset:{i * 1024} lds", ("wo", n)))
            out.append(o)
        return out

    def entry(self):
        S = self.S; e = S.e; c = self.c
        WA, XA, WQD, XD = 204, 208, 210, 211
        self.WA, self.XA, self.WQD, self.XD = WA, XA, WQD, XD
        e("s_cmp_ge_u32 s2, 256"); e("s_cbranch_scc1 L_end")
        if c["prof"]: e(f"s_memrealtime {sr(sProf, 2)}"); e(f"s_memtime {sr(sProf + 18, 2)}")
        e(f"s_and_b32 s{sT0}, s2, 7")
        e(f"s_lshr_b32 s{sBr}, s{sT0}, 2")
        e(f"s_mul_i32 s{sT1}, s{sBr}, 40")
        e(f"s_add_u32 s40, s0, s{sT1}"); e("s_addc_u32 s41, s1, 0")
        e(f"s_load_dwordx2 {sr(sX, 2)}, s[40:41], 0")
        e(f"s_load_dwordx2 {sr(sWq, 2)}, s[40:41], 24")
        e(f"s_load_dwordx2 {sr(sK, 2)}, s[40:41], 8")
        e(f"s_load_dwordx2 {sr(sV, 2)}, s[40:41], 16")
        e(f"s_load_dwordx2 {sr(sWo, 2)}, s[40:41], 32")
        e(f"s_load_dwordx2 {sr(sOut, 2)}, s[0:1], 80")
        e(f"s_load_dwordx2 {sr(sDbg, 2)}, s[0:1], 88")
        e(f"s_load_dwordx2 {sr(sWs, 2)}, s[0:1], 96")
        e("v_lshrrev_b32 v1, 6, v0")
        e(f"s_lshr_b32 s{sIdx}, s2, 3")
        e(f"v_readfirstlane_b32 s{sW}, v1")
        e("v_and_b32 v0, 63, v0")
        e(f"s_lshr_b32 s{sB}, s{sIdx}, 1")
        e(f"s_and_b32 s{sT0}, s{sT0}, 3"); e(f"s_lshl_b32 s{sT0}, s{sT0}, 1")
        e(f"s_and_b32 s{sT1}, s{sIdx}, 1"); e(f"s_add_u32 s{sM}, s{sT1}, s{sT0}")
        for r, n in ((sX, 114688), (sWq, 0x400000), (sK, 0x4000000), (sV, 0x4000000), (sWo, 0x80000), (sWs, WS_BYTES),
                     (sOut, 16 * 112 * 1024 * 2), (sDbg, 256)):
            e(f"s_mov_b32 s{r + 2}, {n}"); e(f"s_mov_b32 s{r + 3}, 0x20000")
        if c["rot"]:
            e(f"s_lshl_b32 s{sT1}, s{sT1}, 2"); e(f"s_xor_b32 s{sT1}, s{sT1}, s{sB}"); e(f"s_and_b32 s{sT1}, s{sT1}, 7")
            e(f"s_lshl_b32 s{sT1}, s{sT1}, 1"); e(f"s_lshr_b32 s{sRot}, s{sB}, 3"); e(f"s_or_b32 s{sRot}, s{sRot}, s{sT1}")
        else: e(f"s_mov_b32 s{sRot}, 0")
        e(f"s_mul_i32 s{sRw}, s{sW}, {RSZ}"); e(f"s_add_u32 s{sRw}, s{sRw}, {LDS_R}")
        e(f"s_lshl_b32 s{sW1k}, s{sW}, 10"); e(f"s_lshl_b32 s{sW4k}, s{sW}, 12")
        e(f"s_lshl_b32 s{sT2}, s{sM}, 2"); e(f"s_add_u32 s{sT2}, s{sT2}, s{sW}")
        e("v_lshrrev_b32 v1, 4, v0"); e("v_and_b32 v2, 15, v0"); e("v_lshlrev_b32 v3, 2, v1"); e("v_xor_b32 v3, v3, v2")
        e("v_lshlrev_b32 v3, 4, v3"); e(f"v_lshl_add_u32 v{WQD}, v1, 13, v3")
        e(f"s_lshl_b32 s{sT0}, s{sT2}, 8"); e(f"v_add_u32 v{WQD}, s{sT0}, v{WQD}")
        e(f"s_and_b32 s{sT0}, s{sW}, 1"); e(f"s_lshl_b32 s{sT0}, s{sT0}, 2"); e(f"v_add_u32 v3, s{sT0}, v1")
        e("v_and_b32 v2, 7, v0"); e("v_xor_b32 v3, v3, v2"); e("v_lshrrev_b32 v2, 3, v0"); e("v_lshlrev_b32 v2, 10, v2")
        e(f"v_lshl_add_u32 v{XD}, v3, 4, v2"); e(f"s_lshl_b32 s{sT0}, s{sW}, 13"); e(f"v_add_u32 v{XD}, s{sT0}, v{XD}")
        e(f"s_mul_i32 s{sT0}, s{sB}, 114688"); e(f"s_lshl_b32 s{sT1}, s{sM}, 19")
        e("s_waitcnt lgkmcnt(0)")
        e(f"s_add_u32 s{sX}, s{sX}, s{sT0}"); e(f"s_addc_u32 s{sX + 1}, s{sX + 1}, 0")
        e(f"s_add_u32 s{sWo}, s{sWo}, s{sT1}"); e(f"s_addc_u32 s{sWo + 1}, s{sWo + 1}, 0")
        self.do(self.x_dma(0) + self.wq_dma(0))
        e(f"s_lshl_b32 s{sCl}, s{sBr}, 4"); e(f"s_add_u32 s{sCl}, s{sCl}, s{sB}")
        e(f"s_lshl_b32 s{sT0}, s{sB}, 5"); e(f"s_add_u32 s{sT0}, s{sT0}, s{sT2}"); e(f"s_lshl_b32 s{sKVb}, s{sT0}, 17")
        if c["krot"]:
            e(f"s_lshl_b32 s{sT0}, s2, 2"); e(f"s_add_u32 s{sT0}, s{sT0}, s{sW}")
            e(f"s_mul_i32 s{sT0}, s{sT0}, 0x9e3779b1"); e(f"s_lshr_b32 s{sT0}, s{sT0}, 28"); e(f"s_lshl_b32 s{sT0}, s{sT0}, 13")
            e(f"s_or_b32 s{sKVb}, s{sKVb}, s{sT0}")
        e(f"s_add_u32 s{sOwn}, s{sM}, s{sB}"); e(f"s_and_b32 s{sOwn}, s{sOwn}, 7")
        cb = fbits(math.log2(math.e) / math.sqrt(128.0))
        e(f"s_mov_b32 s{sC2}, {cb:#x}"); e(f"s_mov_b32 s{sC2 + 1}, {cb:#x}")
        if c["codepf"]:
            e(f"s_getpc_b64 {sr(sLink, 2)}")
            S.label("L_pc")
            e(f"s_sub_u32 s{sLink}, s{sLink}, L_pc-{KNAME}"); e(f"s_subb_u32 s{sLink + 1}, s{sLink + 1}, 0")
            e(f"s_lshl_b32 s{sT0}, s{sIdx}, 2"); e(f"s_add_u32 s{sT0}, s{sT0}, s{sW}"); e(f"s_lshl_b32 s{sT0}, s{sT0}, 9")
            e(f"v_and_b32 v1, 3, v0"); e("v_lshlrev_b32 v1, 7, v1"); e(f"v_add_u32 v1, s{sT0}, v1")
            e(f"v_min_u32 v1, L_end-{KNAME}, v1")
            S.vmem(f"global_load_dword v{MXA}, v1, {sr(sLink, 2)}", "pf")
        e(f"s_lshl_b32 s{sT3}, s{sCl}, 3"); e(f"s_add_u32 s{sT3}, s{sT3}, s{sM}")
        e(f"s_lshl_b32 s{sXi}, s{sT3}, 17"); e(f"s_add_u32 s{sXi}, s{sXi}, s{sW4k}")
        e(f"s_lshl_b32 s{sXo}, s{sCl}, 20"); e(f"s_add_u32 s{sXo}, s{sXo}, s{sW4k}")
        e(f"s_lshl_b32 s{sT0}, s{sW}, 7"); e(f"s_add_u32 s{sT0}, s{sT0}, {FLAG_OFF}")
        e(f"s_lshl_b32 s{sFi}, s{sT3}, 9"); e(f"s_add_u32 s{sFi}, s{sFi}, s{sT0}")
        e(f"s_lshl_b32 s{sFo}, s{sCl}, 12"); e(f"s_add_u32 s{sFo}, s{sFo}, s{sT0}")
        e(f"v_lshlrev_b32 v1, 2, v0"); e(f"v_mov_b32 v2, {OOB}"); e("v_cmp_gt_u32 vcc, 8, v0"); e(f"v_mov_b32 v{MXB}, 0")
        e(f"v_cndmask_b32 v1, v2, v1, vcc")
        S.vmem(f"buffer_store_dword v{MXB}, v1, {sr(sWs, 4)}, s{sFi} offen sc1", "init")
        self.do(self.wq_dma(1) + self.x_dma(1))
        e("v_bfe_u32 v1, v0, 2, 2"); e("v_lshrrev_b32 v2, 4, v0"); e("v_lshl_add_u32 v2, v2, 3, v1"); e("v_lshlrev_b32 v2, 8, v2")
        e("v_and_b32 v3, 3, v0"); e("v_lshl_add_u32 v2, v3, 4, v2"); e(f"v_add_u32 v2, s{sRw}, v2")
        for ks in range(4): e(f"v_xor_b32 v3, {ks}, v1"); e(f"v_lshl_add_u32 v{WA + ks}, v3, 6, v2")
        e("v_and_b32 v1, 15, v0"); e("v_lshrrev_b32 v2, 1, v1"); e("v_lshrrev_b32 v3, 4, v0"); e("v_xor_b32 v2, v2, v3")
        e("v_lshlrev_b32 v2, 4, v2"); e("v_lshl_add_u32 v2, v1, 7, v2")
        e(f"s_and_b32 s{sT0}, s{sRot}, 1"); e(f"s_lshl_b32 s{sT0}, s{sT0}, 6")
        e(f"v_xor_b32 v{XA}, s{sT0}, v2"); e(f"v_xor_b32 v{XA + 1}, 64, v{XA}")
        e("v_and_b32 v2, 7, v0"); e("v_lshlrev_b32 v2, 1, v2"); e("v_xor_b32 v2, v2, v3"); e("v_lshlrev_b32 v2, 4, v2")
        e("v_lshl_add_u32 v2, v1, 8, v2")
        for ks in range(4): e(f"v_xor_b32 v{KA + ks}, {ks << 6}, v2"); e(f"v_add_u32 v{KA + ks}, s{sRw}, v{KA + ks}")
        e("v_lshrrev_b32 v1, 2, v0"); e("v_and_b32 v2, 7, v1"); e("v_lshlrev_b32 v2, 5, v2"); e("v_and_b32 v3, 3, v0")
        e("v_lshl_add_u32 v2, v3, 3, v2"); e("v_lshl_add_u32 v2, v1, 8, v2")
        for t in range(8): e(f"v_xor_b32 v{VA + t}, {t << 5}, v2"); e(f"v_add_u32 v{VA + t}, s{sRw}, v{VA + t}")
        e("v_bfe_u32 v2, v1, 1, 2"); e(f"v_xor_b32 v2, s{sW}, v2"); e("v_lshlrev_b32 v2, 5, v2"); e("v_lshl_add_u32 v2, v3, 3, v2")
        e(f"v_lshl_add_u32 v{WOA}, v1, 7, v2")
        e("v_lshrrev_b32 v1, 4, v0"); e("v_and_b32 v2, 15, v0"); e("v_lshlrev_b32 v3, 1, v1"); e("v_xor_b32 v3, v3, v2")
        e("v_lshlrev_b32 v3, 4, v3"); e(f"v_lshl_add_u32 v{KVD}, v1, 8, v3"); e(f"v_xor_b32 v{KVD + 1}, 0x80, v{KVD}")
        e("v_lshlrev_b32 v3, 1, v1"); e("v_and_b32 v2, 7, v0"); e("v_xor_b32 v3, v3, v2"); e("v_lshrrev_b32 v2, 3, v0"); e("v_lshlrev_b32 v2, 10, v2")
        e(f"v_lshl_add_u32 v{WOD}, v3, 4, v2"); e(f"s_lshl_b32 s{sT0}, s{sW}, 15"); e(f"v_add_u32 v{WOD}, s{sT0}, v{WOD}")
        e(f"v_lshlrev_b32 v{L16}, 4, v0"); e(f"v_add_u32 v{OWA}, s{sRw}, v{L16}")
        e(f"s_mul_i32 s{sT0}, s{sB}, {112 * 2048}"); e(f"s_lshl_b32 s{sT1}, s{sBr}, 10"); e(f"s_add_u32 s{sT0}, s{sT0}, s{sT1}")
        e(f"s_lshl_b32 s{sT1}, s{sOwn}, 7"); e(f"s_add_u32 s{sT0}, s{sT0}, s{sT1}"); e(f"s_lshl_b32 s{sT1}, s{sW}, 5"); e(f"s_add_u32 s{sT0}, s{sT0}, s{sT1}")
        e("v_and_b32 v2, 15, v0"); e("v_lshlrev_b32 v2, 11, v2"); e("v_lshl_add_u32 v2, v1, 3, v2"); e(f"v_add_u32 v{OUTA}, s{sT0}, v2")
        e(f"s_lshl_b32 s{sPf}, s{sB}, 15"); e(f"s_lshl_b32 s{sT0}, s{sW}, 13"); e(f"s_add_u32 s{sPf}, s{sPf}, s{sT0}")
        e(f"v_lshlrev_b32 v212, 7, v0")
        for u in range(7):
            for t in range(8):
                for i in range(4):
                    r = OT(t, u) + i
                    e(f"v_mov_b32 v{r}, 0" if r < 256 else f"v_accvgpr_write_b32 {rr(r)}, 0")

    def wq_dma(self, s):
        S = self.S
        out = []
        for n in range(8):
            o = []
            if n == 0:
                if isinstance(s, int): o += [f"s_add_u32 m0, s{sRw}, {(s % 3) * 8192}", f"s_xor_b32 s{sSo}, s{sRot}, {s}"]
                else: o += [f"s_add_u32 m0, s{sRw}, s{sWd}", f"s_lshl1_add_u32 s{sSo}, s{sLoop}, {s[1]}", f"s_xor_b32 s{sSo}, s{sSo}, s{sRot}"]
                o.append(f"s_lshl_b32 s{sSo}, s{sSo}, 18")
            elif n == 4: o += ["s_addk_i32 m0, 0x1000", f"s_add_u32 s{sSo}, s{sSo}, 35840"]
            else: o.append(f"s_addk_i32 s{sSo}, 31744")
            o.append(lambda n=n: S.vmem(f"buffer_load_dwordx4 v{self.WQD}, {sr(sWq, 4)}, s{sSo} offen offset:{(n & 3) * 1024} lds", ("wq", s)))
            out.append(o)
        return out

    def x_dma(self, j):
        S = self.S
        out = []
        for i in range(4):
            o = [f"s_add_u32 m0, s{sW1k}, {(j % 3) * 16384 + i * 4096}" if isinstance(j, int) else f"s_add_u32 m0, s{sXs}, {i * 4096}"]
            if i == 0:
                o.append(f"s_lshr_b32 s{sSx}, s{sRot}, 1")
                if isinstance(j, int): o += [f"s_xor_b32 s{sSx}, s{sSx}, {j}", f"s_lshl_b32 s{sSx}, s{sSx}, 7"]
                else: o += [f"s_add_u32 s{sT0}, s{sLoop}, 2", f"s_xor_b32 s{sSx}, s{sSx}, s{sT0}", f"s_lshl_b32 s{sSx}, s{sSx}, 7",
                            f"s_cmp_lt_u32 s{sT0}, 8", f"s_cselect_b32 s{sSx}, s{sSx}, 0x7ff00000"]
            else: o.append(f"s_add_u32 s{sSx}, s{sSx}, 32768")
            o.append(lambda: S.vmem(f"buffer_load_dwordx4 v{self.XD}, {sr(sX, 4)}, s{sSx} offen lds", ("x", j)))
            out.append(o)
        return out

    def phase_a(self):
        S = self.S; e = S.e; c = self.c
        WA, XA = self.WA, self.XA
        def BB(p, u): return 148 + 28 * p + 4 * u
        def ard(t, dst, to=0):
            return [lambda j=j: S.ds(f"ds_read_b64_tr_b16 {rr(dst + 2 * j, 2)}, v{WA + t // 2} offset:{j * 1024 + (t & 1) * 8}", ("A", t + to)) for j in range(2)]
        def brd(p, u): return lambda: S.ds(f"ds_read_b128 {rr(BB(p, u), 4)}, v{XA + p} offset:{u * 2048}", ("B", p, u))
        def ring(reg, step, wrap):
            return [f"s_mov_b32 s{sT1}, s{reg}", f"s_add_u32 s{reg}, s{reg}, {step}", f"s_cmp_eq_u32 s{reg}, {wrap}",
                    f"s_cselect_b32 s{reg}, 0, s{reg}", f"s_sub_u32 s{sT1}, s{reg}, s{sT1}"]
        def kstep(p, dm, vtag, last=False):
            mf = []; sl = Slots(56)
            for t in range(8):
                for u in range(7): mf.append(f"{MF} {rr(OT(t, u), 4)}, {rr(FB(t % 4), 4)}, {rr(BB(p, u), 4)}, {rr(OT(t, u), 4)}")
                sl.pre[7 * t].append(lambda t=t: S.need_ds(("A", t), *([("B", p, 6)] if t == 0 else [])))
                if t + 2 < 8: sl.add(7 * t, ard(t + 2, FB((t + 2) % 4)))
            for u in range(7): sl.add(2 + (u * 30) // 7, brd(1 - p, u))
            for k, f in enumerate(dm): sl.add(1 + (k * 33) // len(dm), f)
            rw = ring(sWs_, 8192, 24576)
            sl.add(36, rw + [f"v_add_u32 v{WA + ks}, s{sT1}, v{WA + ks}" for ks in range(4)])
            sl.add(41, lambda: S.need_vm(vtag))
            if last:
                for t in range(8): sl.add(42 + (t * 10) // 8, ard(t, FB(4 + t), 8))
            else:
                sl.add(42, ard(0, FB(0))); sl.add(49, ard(1, FB(1)))
                sl.add(44, ring(sXd0 if p == 1 else sXd1, 16384, 49152) + [f"v_add_u32 v{XA + 1 - p}, s{sT1}, v{XA + 1 - p}"])
            self.run(mf, sl, cap=2, lag=5)
        e(f"s_mov_b32 s{sWs_}, 0"); e(f"s_mov_b32 s{sWd}, 16384"); e(f"s_add_u32 s{sXs}, s{sW1k}, 32768")
        e(f"s_mov_b32 s{sXd0}, 16384"); e(f"s_mov_b32 s{sXd1}, 0"); e(f"s_mov_b32 s{sLoop}, 0")
        S.need_vm(("x", 0), ("wq", 0))
        e("s_barrier")
        self.stamp(1)
        for u in range(7): brd(0, u)()
        self.do(ard(0, FB(0)) + ard(1, FB(1)))
        e(f"v_add_u32 v{XA}, 16384, v{XA}")
        S.drain_ds()
        adv_wd = [f"s_add_u32 s{sWd}, s{sWd}, 8192", f"s_cmp_eq_u32 s{sWd}, 24576", f"s_cselect_b32 s{sWd}, 0, s{sWd}"]
        adv_xs = [f"s_add_u32 s{sXs}, s{sXs}, 16384", f"s_cmp_ge_u32 s{sXs}, 49152", f"s_cselect_b32 s{sXs}, s{sW1k}, s{sXs}"]
        touch = [f"s_lshr_b32 s{sT0}, s{sW}, 1", f"s_add_u32 s{sT0}, s{sT0}, 4", f"s_cmp_eq_u32 s{sT0}, s{sLoop}",
                 f"s_cselect_b32 s{sT0}, s{sPf}, 0x7ff00000",
                 lambda: S.vmem(f"buffer_load_dword v{MXA}, v212, {sr(sWo, 4)}, s{sT0} offen", "pf")]
        S.label("L_aloop")
        S.vm = ["prev"]; S.lg = [("A", 0), ("A", 0), ("A", 1), ("A", 1)]
        xd = self.x_dma("dyn")
        kstep(0, xd[:2] + self.wq_dma(("dyn", 2)) + [adv_wd], "prev")
        S.vm = ["prev"] * len(S.vm)
        e("s_barrier")
        kstep(1, xd[2:] + [adv_xs] + self.wq_dma(("dyn", 3)) + [adv_wd] + ([touch] if c["wopf"] else []), "prev")
        e(f"s_add_u32 s{sLoop}, s{sLoop}, 1"); e(f"s_cmp_lt_u32 s{sLoop}, 7"); e("s_cbranch_scc1 L_aloop")
        S.vm = ["prev"] * len(S.vm)
        k0 = self.kv_dma(0, 0, ("k", 0), pace=False)
        nk = c["k0start"]
        kstep(0, k0[:4] if nk == 0 else [], "prev", last=True)
        e("s_barrier")
        e(f"v_mov_b32 v1, {OOB}"); e(f"v_lshl_add_u32 v2, v0, 2, s{sW}"); e("v_cmp_eq_u32 vcc, 0, v2"); e(f"v_mov_b32 v{MXB}, 1")
        e("v_cndmask_b32 v1, v1, v2, vcc")
        S.vmem(f"buffer_store_byte v{MXB}, v1, {sr(sDbg, 4)}, s{sT3} offen sc1", "ann")
        self.stamp(2)
        TMP = 212
        def qfin(u):
            ops = []
            for ks in range(4):
                src = []
                for ee in range(2):
                    r = OT(2 * ks + ee, u)
                    if r >= 256:
                        tt = TMP + 8 * (ks & 1) + 4 * ee
                        ops += [f"v_accvgpr_read_b32 v{tt + i}, {rr(r + i)}" for i in range(4)]; r = tt
                    src.append(r)
                for r in src: ops += [f"v_pk_mul_f32 {vr(r + 2 * i, 2)}, {vr(r + 2 * i, 2)}, {sr(sC2, 2)}" for i in range(2)]
                ops += [f"v_cvt_pk_bf16_f32 v{src[0] + i}, v{src[i // 2] + 2 * (i & 1)}, v{src[i // 2] + 2 * (i & 1) + 1}" for i in range(4)]
                ops += [f"v_accvgpr_write_b32 {rr(QF(ks, u) + i)}, v{src[0] + i}" for i in range(4)]
            return ops
        mf = []; sl = Slots(56)
        for u in range(7):
            for t in range(8):
                mf.append(f"{MF} {rr(OT(t, u), 4)}, {rr(FB(4 + t), 4)}, {rr(BB(1, u), 4)}, {rr(OT(t, u), 4)}")
                if u == 0: sl.pre[t].append(lambda t=t: S.need_ds(("A", t + 8)))
        q = []
        for u in range(7): q += qfin(u)
        v0 = self.kv_dma(1, 0, ("v", 0))
        dm = (k0[4:] if nk == 0 else k0) + v0
        pos = 0
        for i in range(8, 56):
            lim = 60 * (i // 8)
            for _ in range(2):
                if pos < lim: sl.add(i, q[pos]); pos += 1
        nin = 4 if nk < 2 else 0
        for k in range(nin): sl.add(3 + 13 * k, dm[k])
        self.run(mf, sl)
        rest = q[pos:]; dm = dm[nin:]
        kreads = [self.krd(kf) for kf in range(8)]
        for i, x in enumerate(rest):
            e(x)
            for k in range((i * len(dm)) // len(rest), ((i + 1) * len(dm)) // len(rest)): self.do(dm[k])
            if i == len(rest) - 30:
                S.need_vm(("k", 0))
                for f in kreads: f()
        if c["dump"]:
            for u in range(7):
                for ks in range(4):
                    e(f"s_lshl_b32 s{sT0}, s2, 18"); e(f"s_add_u32 s{sT0}, s{sT0}, {DUMP_OFF - LDS_R + (ks * 7 + u) * 1024}")
                    S.vmem(f"buffer_store_dwordx4 {rr(QF(ks, u), 4)}, v{OWA}, {sr(sWs, 4)}, s{sT0} offen", "dump")
            S.drain_vm()
        self.stamp(3)

    def krd(self, kf):
        S = self.S
        return lambda: S.ds(f"ds_read_b128 {rr(KF(kf), 4)}, v{KA + kf // 2} offset:{8192 + (kf & 1) * 4096}", ("K", kf))
    def vrd(self, t):
        S = self.S
        def g():
            for j in range(2): S.ds(f"ds_read_b64_tr_b16 {rr(VF(t) + 2 * j, 2)}, v{VA + t} offset:{16384 + j * 4096}", ("V", t))
        return g
    def allred(self, r, op):
        return [f"v_mov_b32 v{T0}, v{r}", "s_nop 1", f"v_permlane32_swap_b32 v{r}, v{T0}", f"{op} v{r}, v{r}, v{T0}",
                f"v_mov_b32 v{T0}, v{r}", "s_nop 1", f"v_permlane16_swap_b32 v{r}, v{T0}", f"{op} v{r}, v{r}, v{T0}"]
    def umax(self, u, r):
        b = SS(u)
        return [f"v_max3_f32 v{r}, v{b}, v{b + 1}, v{b + 2}", f"v_max3_f32 v{r}, v{r}, v{b + 3}, v{b + 4}",
                f"v_max3_f32 v{r}, v{r}, v{b + 5}, v{b + 6}", f"v_max_f32 v{r}, v{r}, v{b + 7}"]
    def sm(self, u, first=False):
        b = SS(u); l = LL(u)
        ex = [f"v_exp_f32 v{b + i}, v{b + i}" for i in range(8)]
        ad = [f"v_add_f32 v{l}, v{l}, v{b + i}" for i in range(8)]
        if first: ad[0] = f"v_mov_b32 v{l}, v{b}"
        cv = [f"v_cvt_pk_bf16_f32 v{b + i}, v{b + 2 * i}, v{b + 2 * i + 1}" for i in range(4)]
        return [ex[0], ex[1], ad[0], ex[2], ad[1], ex[3], cv[0], ad[2], ex[4], ad[3], ex[5], cv[1], ad[4], ex[6], ad[5], ex[7], cv[2], cv[3], ad[6], ad[7]]

    def tile(self, mode, vtag, ktag):
        S = self.S; e = S.e; c = self.c
        first, last = mode == "first", mode == "last"
        mf = []; sl = Slots(56)
        for u in range(7):
            for kf in range(8):
                ks, ee = kf // 2, kf & 1
                d = SS(u) + 4 * ee
                cin = vr(d, 4) if ks else ("0" if first else vr(CT(u), 4))
                mf.append(f"{MF} {vr(d, 4)}, {rr(KF(kf), 4)}, {rr(QF(ks, u), 4)}, {cin}")
                if u == 0: sl.pre[kf].append(lambda kf=kf: S.need_ds(("K", kf)))
        def mx(u):
            b = SS(u)
            if u == 0: return [f"v_max3_f32 v{MXA}, v{b}, v{b + 1}, v{b + 2}", f"v_max3_f32 v{MXB}, v{b + 3}, v{b + 4}, v{b + 5}", f"v_max3_f32 v{MXA}, v{MXA}, v{b + 6}, v{b + 7}"]
            return [f"v_max3_f32 v{(MXB, MXA)[i & 1]}, v{(MXB, MXA)[i & 1]}, v{b + 2 * i}, v{b + 2 * i + 1}" for i in range(4)]
        def init(u):
            o = self.umax(u, MXA) + self.allred(MXA, "v_max_f32")
            o += [f"v_sub_f32 v{SS(u) + i}, v{SS(u) + i}, v{MXA}" for i in range(8)] + [f"v_sub_f32 v{CT(u) + i}, 0, v{MXA}" for i in range(4)]
            return o
        for u in range(6):
            if first: sl.spread(8 * (u + 1) + 4, 8 * (u + 2), init(u))
            else: sl.spread(min(8 * (u + 1) + 6, 52), min(8 * (u + 2) + 2, 56), mx(u))
        if last:
            dm = self.wo_dma(0) + self.wo_dma(1) + self.wo_dma(2)
            sl.spread(2, 38, dm)
            def chk():
                e(f"s_lshl_b32 s{sT3}, s{sCl}, 3"); e(f"v_mov_b32 v{KVD}, 0")
                S.vmem(f"buffer_load_dwordx2 {vr(KA + 1, 2)}, v{KVD}, {sr(sDbg, 4)}, s{sT3} offen sc1", "chk")
            sl.add(39, chk)
        else:
            dm = self.kv_dma(0, 1 if first else None, ktag)
            for k, f in enumerate(dm): sl.add(8 + 6 * k, f)
        vpos = 39
        if not last:
            sl.add(vpos, lambda: S.need_vm(vtag))
            for t in range(1, 8): sl.add(vpos + 2 * t - 1, self.vrd(t))
            sl.add(55, self.vrd(0))
        self.run(mf, sl)
        if first:
            for x in init(6): e(x)
        else:
            for x in mx(6): e(x)
            e(f"v_max_f32 v{MXA}, v{MXA}, v{MXB}")
            e(f"v_cmp_lt_f32 vcc, 0x41000000, v{MXA}")
            e(f"s_cbranch_vccz L_ok_{mode}")
            e(f"s_call_b64 {sr(sLink, 2)}, L_rare")
            S.label(f"L_ok_{mode}")
        mf = []; sl = Slots(56)
        for u in range(7):
            for t in range(8):
                mf.append(f"{MF} {rr(OT(t, u), 4)}, {rr(VF(t), 4)}, {vr(SS(u), 4)}, {'0' if first else rr(OT(t, u), 4)}")
                if u == 0: sl.pre[t].append(lambda t=t: S.need_ds(("V", t)))
        if not last:
            for x in self.sm(0, first): e(x)
            for u in range(6): sl.spread(8 * u, 8 * u + 8, self.sm(u + 1, first))
            dm = self.kv_dma(1, 1 if first else None, ("v", "next"))
            for k, f in enumerate(dm): sl.add(1 + 7 * k, f)
            sl.add(38, lambda: S.need_vm(ktag))
            for kf in range(7): sl.add(38 + 2 * kf, self.krd(kf))
            sl.add(52, self.krd(7))
            self.run(mf, sl)
            return
        TMP = 204
        for u in range(7):
            for x in self.sm(u): e(x)
            if u == 3:
                S.need_vm(vtag)
                for t in range(8): self.vrd(t)()
        def fin(u):
            ops = self.allred(LL(u), "v_add_f32") + [f"v_rcp_f32 v{T1}, v{LL(u)}"]
            for ks in range(4):
                src = []
                for ee in range(2):
                    r = OT(2 * ks + ee, u)
                    if r >= 256:
                        tt = TMP + 12 * (u & 1) + 4 * (2 * ks + ee - 5)
                        ops += [f"v_accvgpr_read_b32 v{tt + i}, {rr(r + i)}" for i in range(4)]; r = tt
                    src.append(r)
                for r in src: ops += [f"v_pk_mul_f32 {vr(r + 2 * i, 2)}, {vr(r + 2 * i, 2)}, {vr(T1, 2)} op_sel_hi:[1,0]" for i in range(2)]
                ops += [f"v_cvt_pk_bf16_f32 v{src[0] + i}, v{src[i // 2] + 2 * (i & 1)}, v{src[i // 2] + 2 * (i & 1) + 1}" for i in range(4)]
                def wr(ks=ks, r=src[0]):
                    S.ds(f"ds_write_b128 v{OWA}, {vr(r, 4)} offset:{(ks * 7 + u) * 1024}", ("ow", u))
                    if c["dump"]:
                        e(f"s_lshl_b32 s{sT0}, s2, 18"); e(f"s_add_u32 s{sT0}, s{sT0}, {DUMP_OFF - LDS_R + 131072 + (ks * 7 + u) * 1024}")
                        S.vmem(f"buffer_store_dwordx4 {vr(r, 4)}, v{OWA}, {sr(sWs, 4)}, s{sT0} offen", "dump")
                ops.append(wr)
            if u >= 2: ops.insert(0, lambda: S.need_ds(("ow", u - 2)))
            return ops
        for u in range(6): sl.spread(8 * u + 8, 8 * u + 16, fin(u))
        self.run(mf, sl)
        for x in fin(6): self.do(x)

    def rare(self):
        R = ["L_rare:"]
        for u in range(7):
            R += self.umax(u, MXA) + self.allred(MXA, "v_max_f32")
            R += [f"v_max_f32 v{MXA}, 0, v{MXA}", f"v_sub_f32 v{T1}, 0, v{MXA}", f"v_exp_f32 v{T1}, v{T1}"]
            R += [f"v_sub_f32 v{SS(u) + i}, v{SS(u) + i}, v{MXA}" for i in range(8)]
            R += [f"v_sub_f32 v{CT(u) + i}, v{CT(u) + i}, v{MXA}" for i in range(4)]
            R += [f"v_mul_f32 v{LL(u)}, v{LL(u)}, v{T1}"]
            for t in range(8):
                for i in range(4):
                    r = OT(t, u) + i
                    if r < 256: R.append(f"v_mul_f32 v{r}, v{r}, v{T1}")
                    else: R += [f"v_accvgpr_read_b32 v{T0}, {rr(r)}", f"v_mul_f32 v{T0}, v{T0}, v{T1}", f"v_accvgpr_write_b32 {rr(r)}, v{T0}"]
        R += ["s_nop 1", f"s_setpc_b64 {sr(sLink, 2)}"]
        return R

    def phase_att(self):
        S = self.S; e = S.e; c = self.c
        self.tile("first", ("v", 0), ("k", "next"))
        e(f"s_mov_b32 s{sLoop}, 2")
        S.label("L_tloop")
        if c["fine"]:
            e("s_memrealtime s[100:101]"); e(f"s_mov_b32 m0, s{sLoop}"); e("s_waitcnt lgkmcnt(0)"); e(f"v_writelane_b32 v{T2}, s100, m0")
        vm0, lg0 = list(S.vm), list(S.lg)
        S.vm = [("v", "cur")] * len(S.vm)
        self.tile("loop", ("v", "cur"), ("k", "next"))
        assert S.vm == vm0 and S.lg == lg0, (S.vm, vm0, S.lg, lg0)
        e(f"s_add_u32 s{sLoop}, s{sLoop}, 1"); e(f"s_cmp_lt_u32 s{sLoop}, 16"); e("s_cbranch_scc1 L_tloop")
        if c["fine"]:
            e(f"s_lshl_b32 s{sT0}, s2, 10"); e(f"s_lshl_b32 s{sT1}, s{sW}, 8"); e(f"s_add_u32 s{sT0}, s{sT0}, s{sT1}"); e(f"s_add_u32 s{sT0}, s{sT0}, {PROF_OFF + 0x10000}")
            e(f"v_lshlrev_b32 v{T0}, 2, v0"); S.vmem(f"buffer_store_dword v{T2}, v{T0}, {sr(sWs, 4)}, s{sT0} offen", "fine")
        self.stamp(4)
        self.tile("last", ("v", "next"), None)

    def phase_d(self):
        S = self.S; e = S.e; c = self.c
        def BR(ks, u):
            i = ks * 7 + u
            if i < 64: return A0 + 4 * i
            if i < 84: return 8 + 4 * (i - 64)
            return 88 + 4 * ((i - 84) % 8)
        ACC = [120, 148]; SUM = 176; IN = [204, 218]; AR = 232
        WOA2, BA, BA2, L8, FAI, FAO, PL = 248, 249, 250, 251, 252, 253, 254
        ONE = T2
        S.need_vm("chk")
        e(f"s_mov_b32 s{sSpin}, 0")
        S.label("L_chk")
        e(f"v_and_b32 v{KA + 1}, v{KA + 1}, v{KA + 2}")
        e(f"v_cmp_ne_u32 vcc, 0x01010101, v{KA + 1}")
        e("s_cbranch_vccz L_chk_ok")
        e(f"s_add_u32 s{sSpin}, s{sSpin}, 1"); e(f"s_cmp_gt_u32 s{sSpin}, 0x40000"); e("s_cbranch_scc1 L_chk_ok")
        e("s_sleep 8")
        e(f"buffer_load_dwordx2 {vr(KA + 1, 2)}, v{KVD}, {sr(sDbg, 4)}, s{sT3} offen sc1")
        e("s_waitcnt vmcnt(0)")
        e("s_branch L_chk")
        S.label("L_chk_ok")
        e(f"v_add_u32 v{WOA2}, 0x10000, v{WOA}"); e(f"v_add_u32 v{BA}, {LDS_R}, v{L16}"); e(f"v_add_u32 v{BA2}, {LDS_R + 65536}, v{L16}")
        e(f"v_lshrrev_b32 v{L8}, 1, v{L16}"); e(f"v_mov_b32 v{T0}, {OOB}"); e(f"v_lshlrev_b32 v{FAI}, 2, v0")
        e("v_cmp_eq_u32 vcc, 0, v0"); e(f"v_mov_b32 v{ONE}, 1"); e(f"v_cndmask_b32 v{FAO}, v{T0}, v0, vcc")
        e("v_cmp_gt_u32 vcc, 8, v0"); e("s_nop 0"); e(f"v_cndmask_b32 v{FAI}, v{T0}, v{FAI}, vcc")
        S.drain_vm(); S.drain_ds(force=True)
        self.stamp(5)
        e("s_barrier")
        NK = 128
        mf = []; sl = Slots(7 * NK)
        G = c["G"]
        RA = 2
        bars = [3, 7, 10, 14] + list(range(18, NK - 4, 4 * G))
        nxt = [3]
        def ard(k):
            n = k // 4; slot = (n % 8) * 16384
            return [lambda j=j: S.ds(f"ds_read_b64_tr_b16 {vr(AR + 4 * (k % 4) + 2 * j, 2)}, v{WOA2 if slot >= 65536 else WOA} offset:{slot % 65536 + (k % 4) * 4096 + j * 2048}", ("A", k)) for j in range(2)]
        def brd(k, u):
            ks = k % 16; off = (ks * 7 + u) * 1024
            return lambda: S.ds(f"ds_read_b128 {rr(BR(ks, u), 4)}, v{BA2 if off >= 65536 else BA} offset:{off % 65536}", ("B", k, u))
        needb = lambda k: k < 16 or k % 16 >= 12
        def free(n, kb):
            return (16 * (n - 2) - 1 <= 7 * kb) if n < 8 else (4 * (n - 8) + 3 <= kb)
        for k in range(NK):
            p = k // 16
            for u in range(7):
                a = ACC[p & 1] + 4 * u
                mf.append(f"{MF} {vr(a, 4)}, {vr(AR + 4 * (k % 4), 4)}, {rr(BR(k % 16, u), 4)}, {'0' if k % 16 == 0 else vr(a, 4)}")
                nd = ([("A", k)] if u == 0 else []) + ([("B", k, u)] if needb(k) else [])
                if nd: sl.pre[7 * k + u].append(lambda nd=nd: S.need_ds(*nd))
            kk = k + RA
            if kk < NK:
                if k in bars:
                    nb = min([b for b in bars if b > k] + [NK])
                    hi = min((nb - 1 + RA) // 4, 31)
                    assert nxt[0] > hi, (k, hi, nxt)
                    def bar(hi=hi):
                        S.need_vm(*[("wo", i) for i in range(hi + 1)]); e("s_barrier")
                    sl.add(7 * k, bar)
                    dm = []
                    while nxt[0] < 32 and free(nxt[0], k): dm += self.wo_dma(nxt[0]); nxt[0] += 1
                    span = min(len(dm) * (3 if k < 18 else 6), 7 * (nb - k) - 4)
                    if dm: sl.spread(7 * k + 2, 7 * k + 2 + span, dm)
                sl.add(7 * k, ard(kk))
            if k + 1 < NK and needb(k + 1):
                for u in range(7): sl.add(7 * k + u, brd(k + 1, u))
        def send(t):
            a = ACC[(t - 1) & 1]
            ops = []
            ops += [f"s_add_u32 s{sSo}, s{sM}, {t}", f"s_and_b32 s{sSo}, s{sSo}, 7", f"s_lshl_b32 s{sSo}, s{sSo}, 17",
                    f"s_add_u32 s{sSo}, s{sSo}, {XCH_OFF + t * 16384}", f"s_add_u32 s{sSo}, s{sSo}, s{sXo}"]
            for i in range(14):
                ops.append(f"v_cvt_pk_bf16_f32 v{a + i}, v{a + 2 * i}, v{a + 2 * i + 1}")
                if i % 4 == 3: ops.append(lambda j=i // 4: S.vmem(f"buffer_store_dwordx4 {vr(a + 4 * j, 4)}, v{L16}, {sr(sWs, 4)}, s{sSo} offen offset:{j * 1024} sc1", ("st", t)))
            ops.append(lambda: S.vmem(f"buffer_store_dwordx2 {vr(a + 12, 2)}, v{L8}, {sr(sWs, 4)}, s{sSo} offen offset:3072 sc1", ("st", t)))
            return ops
        def flag(t):
            def g():
                S.need_vm(("st", t))
                S.vmem(f"buffer_store_dword v{ONE}, v{FAO}, {sr(sWs, 4)}, s{sT1} offen offset:{t * 4} sc1", "fl")
            return [f"s_add_u32 s{sT1}, s{sM}, {t}", f"s_and_b32 s{sT1}, s{sT1}, 7", f"s_lshl_b32 s{sT1}, s{sT1}, 9", f"s_add_u32 s{sT1}, s{sT1}, s{sFo}", g]
        poll = lambda: S.vmem(f"buffer_load_dword v{PL}, v{FAI}, {sr(sWs, 4)}, s{sFi} offen sc1", "poll")
        def check(t):
            def g():
                S.need_vm("poll")
                e(f"v_readlane_b32 s{sT0}, v{PL}, {t}"); e(f"s_add_u32 s{sT2}, s{sXi}, {XCH_OFF + t * 16384}"); e(f"s_cmp_eq_u32 s{sT0}, 1"); e(f"s_cbranch_scc0 L_spin{t}")
                S.label(f"L_got{t}")
                self.ool += [f"L_spin{t}:", f"s_mov_b32 s{sSpin}, 0", f"L_spl{t}:",
                             f"buffer_load_dword v{PL}, v{FAI}, {sr(sWs, 4)}, s{sFi} offen sc1", "s_waitcnt vmcnt(0)",
                             f"v_readlane_b32 s{sT0}, v{PL}, {t}", f"s_cmp_eq_u32 s{sT0}, 1", f"s_cbranch_scc1 L_got{t}",
                             f"s_add_u32 s{sSpin}, s{sSpin}, 1", f"s_cmp_gt_u32 s{sSpin}, 0x40000", f"s_cbranch_scc1 L_got{t}", "s_sleep 1", f"s_branch L_spl{t}"]
            b = IN[t & 1]
            return [g] + [lambda j=j: S.vmem(f"buffer_load_dwordx4 {vr(b + 4 * j, 4)}, v{L16}, {sr(sWs, 4)}, s{sT2} offen offset:{j * 1024} sc1", ("in", t)) for j in range(3)] \
                   + [lambda: S.vmem(f"buffer_load_dwordx2 {vr(b + 12, 2)}, v{L8}, {sr(sWs, 4)}, s{sT2} offen offset:3072 sc1", ("in", t))]
        def accum(t):
            b = IN[t & 1]
            ops = [lambda: S.need_vm(("in", t))]
            for i in range(14):
                d = SUM + 2 * i
                if t == 1: ops += [f"v_lshlrev_b32 v{d}, 16, v{b + i}", f"v_and_b32 v{d + 1}, 0xffff0000, v{b + i}"]
                else: ops += [f"v_lshlrev_b32 v{T0}, 16, v{b + i}", f"v_and_b32 v{b + i}, 0xffff0000, v{b + i}",
                              f"v_add_f32 v{d}, v{d}, v{T0}", f"v_add_f32 v{d + 1}, v{d + 1}, v{b + i}"]
            return ops
        post = []
        for t in range(1, 8):
            p0 = 112 * t
            sl.spread(p0 + 3, p0 + 24, send(t))
            sl.add(p0 + (c["flagpos7"] if t == 7 else c["flagpos"]), flag(t))
            if t <= 6:
                sl.add(p0 + 112 + c["pollpos"], poll); sl.add(p0 + 112 + c["chkpos"], check(t))
            else: post += [poll]
            if t <= 4: sl.spread(p0 + 336 + 26, p0 + 336 + 80, accum(t))
        for k in range(RA): self.do(ard(k))
        for u in range(7): brd(0, u)()
        self.run(mf, sl, cap=2, lag=2)
        self.stamp(6)
        for x in post: self.do(x)
        for x in accum(5): self.do(x)
        a = ACC[1]
        for i in range(28): e(f"v_add_f32 v{SUM + i}, v{SUM + i}, v{a + i}")
        self.do(check(7))
        for x in accum(6) + accum(7): self.do(x)
        self.stamp(7)
        e(f"s_mov_b32 s{sT0}, 0")
        for u in range(7):
            d = SUM + 4 * u
            e(f"v_cvt_pk_bf16_f32 v{d}, v{d}, v{d + 1}"); e(f"v_cvt_pk_bf16_f32 v{d + 1}, v{d + 2}, v{d + 3}")
            S.vmem(f"buffer_store_dwordx2 {vr(d, 2)}, v{OUTA}, {sr(sOut, 4)}, s{sT0} offen", "out")
            e(f"s_add_u32 s{sT0}, s{sT0}, 32768")
        if c["prof"]:
            S.drain_vm(); self.stamp(8)
            e(f"s_memtime {sr(sProf + 20, 2)}"); S.drain_ds(force=True)
            e(f"s_lshl_b32 s{sT0}, s2, 8"); e(f"s_lshl_b32 s{sT1}, s{sW}, 6"); e(f"s_add_u32 s{sT0}, s{sT0}, s{sT1}"); e(f"s_add_u32 s{sT0}, s{sT0}, {PROF_OFF}")
            e("v_mov_b32 v8, 0"); e("s_mov_b64 exec, 1")
            for i in range(12):
                e(f"v_mov_b32 v9, s{sProf + 2 * i}")
                e(f"buffer_store_dword v9, v8, {sr(sWs, 4)}, s{sT0} offen offset:{4 * i}")
        e("s_endpgm")

    def build(self):
        self.entry(); self.phase_a(); self.phase_att(); self.phase_d()
        rep = []
        body = pad_hazards(self.S.L + self.ool + self.rare(), rep)
        self.nops = rep
        hdr = open("header.txt").read().rstrip("\n").split("\n")
        L = hdr + ["; @launch grid=(256,1,1) block=(256,1,1) lds=163840",
                   '.amdgcn_target "amdgcn-amd-amdhsa--gfx950"', ".text", f".globl {KNAME}", ".p2align 8",
                   f".type {KNAME},@function", f"{KNAME}:"]
        L += [("    " + x if not x.endswith(":") else x) for x in body]
        L += ["L_end:", "    s_endpgm", '.section .rodata,"a"', ".p2align 6", f".amdhsa_kernel {KNAME}",
              "  .amdhsa_next_free_vgpr 512", "  .amdhsa_next_free_sgpr 102", "  .amdhsa_accum_offset 256",
              "  .amdhsa_group_segment_fixed_size 0", "  .amdhsa_kernarg_size 104", "  .amdhsa_user_sgpr_count 2",
              "  .amdhsa_user_sgpr_kernarg_segment_ptr 1", "  .amdhsa_system_sgpr_workgroup_id_x 1",
              "  .amdhsa_float_denorm_mode_32 3", ".end_amdhsa_kernel"]
        return "\n".join(L) + "\n"

if __name__ == "__main__":
    import ast
    out = sys.argv[1]
    kw = {}
    for a in sys.argv[2:]:
        k, v = a.split("=", 1); kw[k] = ast.literal_eval(v)
    g = Gen(**kw)
    open(out, "w").write(g.build())
    print("nops inserted:", len(g.nops))
    for n in g.nops: print("  ", n)
```

```python
import sys, ast
sys.path.insert(0,'work')
import gen3
KN=gen3.KNAME
def mkz(name, i, red="max", **kw):
    real=gen3.Gen(prof=True, **kw).build()
    L=[];e=L.append
    e(".globl z_kernel"); e(".p2align 8"); e(".type z_kernel,@function"); e("z_kernel:")
    e("s_cmp_ge_u32 s2, 1"); e("s_cbranch_scc1 LZ_end")
    e("s_load_dwordx2 s[8:9], s[0:1], 96"); e(f"s_mov_b32 s10, {gen3.WS_BYTES}"); e("s_mov_b32 s11, 0x20000")
    e("v_lshlrev_b32 v1, 10, v0"); e("v_and_b32 v3, 3, v0"); e("v_lshl_add_u32 v1, v3, 8, v1"); e(f"s_mov_b32 s4, {gen3.PROF_OFF+4*i}"); e("s_waitcnt lgkmcnt(0)")
    e("buffer_load_dword v2, v1, s[8:11], s4 offen sc1"); e("s_memrealtime s[12:13]"); e("s_waitcnt vmcnt(0) lgkmcnt(0)")
    e("v_sub_u32 v2, s12, v2"); e("s_nop 1"); e("s_mov_b32 s20, 0")
    for l in range(64): e(f"v_readlane_b32 s21, v2, {l}"); e("s_nop 1"); e("s_add_u32 s20, s20, s21")
    e("s_lshr_b32 s20, s20, 6"); e("s_sub_u32 s20, s12, s20")
    e("s_mov_b32 s22, 0")
    e("LZ_l:"); e("s_memrealtime s[14:15]"); e("s_waitcnt lgkmcnt(0)"); e("s_sub_u32 s14, s14, s20"); e("s_add_u32 s22, s22, 1")
    e("s_cmp_gt_u32 s22, 20000"); e("s_cbranch_scc1 LZ_end"); e("s_cmp_lt_u32 s14, 10000"); e("s_cbranch_scc1 LZ_l")
    e("LZ_end:"); e("s_endpgm")
    kd=".p2align 6\n.amdhsa_kernel z_kernel\n  .amdhsa_next_free_vgpr 32\n  .amdhsa_next_free_sgpr 102\n  .amdhsa_accum_offset 32\n  .amdhsa_group_segment_fixed_size 0\n  .amdhsa_kernarg_size 104\n  .amdhsa_user_sgpr_count 2\n  .amdhsa_user_sgpr_kernarg_segment_ptr 1\n  .amdhsa_system_sgpr_workgroup_id_x 1\n.end_amdhsa_kernel\n"
    r=real.replace("; @launch grid=(256,1,1) block=(256,1,1) lds=163840",f"; @launch kernel={KN} grid=(256,1,1) block=(256,1,1) lds=163840\n; @launch kernel=z_kernel grid=(1,1,1) block=(64,1,1) lds=0")
    r=r.replace('.section .rodata,"a"',"\n".join(L)+'\n.section .rodata,"a"')+kd
    open(f'work/{name}.s','w').write(r)
if __name__=="__main__":
    kw={}
    for a in sys.argv[1:]:
        k,v=a.split("=",1); kw[k]=ast.literal_eval(v)
    for i in range(9): mkz(f"z{i}",i,**kw)
```
